```python
import torch

def _softmax(x, axis=-1):
    return torch.softmax(x, dim=axis)
def _gelu(x):
    return torch.nn.functional.gelu(x, approximate="tanh")
def _silu(x):
    return torch.nn.functional.silu(x)
def _sigmoid(x):
    return torch.sigmoid(x)
def _layernorm(x, axis=-1, eps=1e-5):
    m = x.mean(dim=axis, keepdim=True)
    v = x.var(dim=axis, keepdim=True, unbiased=False)
    return (x - m) / torch.sqrt(v + eps)
def _scatter_add(tgt, idx, src, axis=0):
    return tgt.clone().index_add_(axis, idx, src)
def _segment_sum(src, seg, n):
    out = torch.zeros((n,) + src.shape[1:], dtype=src.dtype)
    return out.index_add_(0, seg, src)
def _pad(x, pw):
    flat = tuple(v for pair in reversed(pw) for v in pair)
    return torch.nn.functional.pad(x, flat)

kernel_name = 'sequential_preLN__mha_block_cached__swiglu_ffn__decode'

def setup_inputs():

    _w = (lambda a: (lambda t: t.to(torch.bfloat16) if t.is_floating_point() else t)(torch.as_tensor(a)))
    def _A_setup():
        B, Sq, D = 2, 1, 512
        H, Sk, Dh = 32, 16384, 128
        return {
            "x": _w((lambda *s: torch.randn(*s, dtype=torch.bfloat16) * 0.05)(B, Sq, D)),
            "k_cache": _w((lambda *s: torch.randn(*s, dtype=torch.bfloat16) * 3.2)(B, H, Sk, Dh)),
            "v_cache": _w((lambda *s: torch.randn(*s, dtype=torch.bfloat16) * 0.4)(B, H, Sk, Dh)),
            "wq": _w((lambda *s: torch.randn(*s, dtype=torch.bfloat16) * 3.2)(D, H * Dh) * (D ** -0.5)),
            "wo": _w((lambda *s: torch.randn(*s, dtype=torch.bfloat16) * 0.4)(H * Dh, D) * ((H * Dh) ** -0.5)),
        }
    _A_in = _A_setup()

    def _B_setup():
        B, S, D, F = 2, 1, 512, 1792
        return {
            "x": _w((lambda *s: torch.randn(*s, dtype=torch.bfloat16) * 0.05)(B, S, D)),
            "w_gate": _w((lambda *s: torch.randn(*s, dtype=torch.bfloat16) * 0.05)(D, F)),
            "w_up": _w((lambda *s: torch.randn(*s, dtype=torch.bfloat16) * 0.05)(D, F)),
            "w_down": _w((lambda *s: torch.randn(*s, dtype=torch.bfloat16) * 0.05)(F, D)),
        }
    _B_in = _B_setup()

    return {
        "A_x": _A_in["x"],
        "A_k_cache": _A_in["k_cache"],
        "A_v_cache": _A_in["v_cache"],
        "A_wq": _A_in["wq"],
        "A_wo": _A_in["wo"],
        "B_x": _B_in["x"],
        "B_w_gate": _B_in["w_gate"],
        "B_w_up": _B_in["w_up"],
        "B_w_down": _B_in["w_down"],
    }

def reference(A_x, A_k_cache, A_v_cache, A_wq, A_wo, B_x, B_w_gate, B_w_up, B_w_down):
    def _A_ref(x, k_cache, v_cache, wq, wo):
        B, Sq, D = x.shape
        H, Dh = 32, 128
        q = (lambda x, *d: x.permute(*d))((x @ wq).reshape(B, Sq, H, Dh), 0, 2, 1, 3)
        scores = torch.einsum("bhqd,bhkd->bhqk", q, k_cache) * (Dh ** -0.5)
        p = _softmax(scores, axis=-1)
        o = torch.einsum("bhqk,bhkd->bhqd", p, v_cache)
        return (lambda x, *d: x.permute(*d))(o, 0, 2, 1, 3).reshape(B, Sq, H * Dh) @ wo

    def _B_ref(x, w_gate, w_up, w_down):
        g = _silu(x @ w_gate)
        u = x @ w_up
        return (g * u) @ w_down

    x = A_x
    h = x + _A_ref(_layernorm(x, axis=-1), A_k_cache, A_v_cache, A_wq, A_wo)
    h2 = h + _B_ref(_layernorm(h, axis=-1), B_w_gate, B_w_up, B_w_down)
    return h2
```

```python
import struct, sys, os
NT = os.environ.get('NT', '')

HDR = open('sequential_preLN__mha_block_cached__swiglu_ffn__decode.s.ref').read().split('\n')
HDR = [l for l in HDR if l.startswith(';') and '@launch' not in l and 'Override' not in l and 'grid=ceil' not in l]

def f2u(x):
    return struct.unpack('<I', struct.pack('<f', x))[0]

L2E = f2u(1.4426950408889634)
SCALE = f2u(128 ** -0.5)
EPS = f2u(1e-5)

PART_O = 0
PART_ML = 0x40000
ATTN_PART = 0x80000
H_BUF = 0xC0000
DOWN_PART = 0x100000
WS_SIZE = 0x200000

out = []
def e(s):
    out.append('    ' + s)
def lab(s):
    out.append(s + ':')

def srd(d, base_lo, base_hi, nrec):
    e(f's_mov_b32 s{d}, {base_lo}')
    e(f's_and_b32 s{d+1}, {base_hi}, 0xffff')
    e(f's_mov_b32 s{d+2}, {nrec}')
    e(f's_mov_b32 s{d+3}, 0x00020000')

def bf16_round(v, tmp):
    e(f'v_cvt_pk_bf16_f32 v{tmp}, v{v}, v{v}')
    e(f'v_lshlrev_b32 v{v}, 16, v{tmp}')

def row_allreduce(vals, op='add'):
    ins = 'v_add_f32' if op == 'add' else 'v_max_f32'
    for rot in (8, 4, 2, 1):
        if len(vals) < 3:
            e('s_nop 1')
        for v in vals:
            e(f'{ins}_dpp v{v}, v{v}, v{v} row_ror:{rot} row_mask:0xf bank_mask:0xf')
    e('s_nop 1')

def cross_row_allreduce(vals, tmps):
    for ins in ('v_permlane16_swap_b32', 'v_permlane32_swap_b32'):
        for v, t in zip(vals, tmps):
            e(f'v_mov_b32 v{t}, v{v}')
        e('s_nop 1')
        for v, t in zip(vals, tmps):
            e(f'{ins} v{v}, v{t}')
        e('s_nop 1')
        for v, t in zip(vals, tmps):
            e(f'v_add_f32 v{v}, v{v}, v{t}')
        e('s_nop 1')

def unpack8(src, dst):
    for j in range(4):
        e(f'v_lshlrev_b32 v{dst+2*j}, 16, v{src+j}')
        e(f'v_and_b32 v{dst+2*j+1}, 0xffff0000, v{src+j}')

def pk_fma_bc(acc, src, sc):
    if sc % 2 == 0:
        e(f'v_pk_fma_f32 v[{acc}:{acc+1}], v[{src}:{src+1}], v[{sc}:{sc+1}], v[{acc}:{acc+1}] op_sel_hi:[1,0,1]')
    else:
        e(f'v_pk_fma_f32 v[{acc}:{acc+1}], v[{src}:{src+1}], v[{sc-1}:{sc}], v[{acc}:{acc+1}] op_sel:[0,1,0] op_sel_hi:[1,1,1]')

def kernel_begin(name):
    out.append('.text')
    out.append(f'.globl {name}')
    out.append('.p2align 8')
    out.append(f'.type {name},@function')
    lab(name)

descs = []
def kernel_end(name, vgpr, sgpr=102):
    e('s_endpgm')
    descs.append((name, vgpr, sgpr))

K1 = 'sequential_preLN__mha_block_cached__swiglu_ffn__decode_kernel'
def gen_k1():
    kernel_begin(K1)
    XN = 0; QRED = 2048; QB = QRED + 8192; MB = QB + 256; LB = MB + 256; ACC = LB + 256
    RED2 = ACC + 32768; LP = RED2 + 4096; LDS_TOTAL = LP + 64
    global K1_LDS; K1_LDS = LDS_TOTAL
    e('s_cmp_ge_u32 s2, 256')
    e('s_cbranch_scc1 K1_DONE')
    e('s_load_dwordx4 s[4:7], s[0:1], 0')
    e('s_load_dwordx4 s[8:11], s[0:1], 16')
    e('s_load_dwordx2 s[12:13], s[0:1], 88')
    e('v_and_b32 v1, 63, v0')
    e('v_lshrrev_b32 v2, 6, v0')
    e('s_nop 0')
    e('v_readfirstlane_b32 s14, v2')
    e('s_lshr_b32 s15, s2, 2')
    e('s_lshr_b32 s16, s15, 5')
    e('s_and_b32 s17, s15, 31')
    e('s_waitcnt lgkmcnt(0)')
    e('s_lshl_b32 s18, s2, 20')
    e('s_lshr_b32 s19, s2, 12')
    e('s_add_u32 s40, s6, s18')
    e('s_addc_u32 s41, s7, s19')
    srd(20, 's40', 's41', 0x100000)
    e('s_add_u32 s40, s8, s18')
    e('s_addc_u32 s41, s9, s19')
    srd(24, 's40', 's41', 0x100000)
    e('s_lshl_b32 s18, s16, 10')
    e('s_add_u32 s40, s4, s18')
    e('s_addc_u32 s41, s5, 0')
    srd(28, 's40', 's41', 1024)
    e('s_lshl_b32 s18, s17, 8')
    e('s_add_u32 s40, s10, s18')
    e('s_addc_u32 s41, s11, 0')
    e('s_sub_u32 s42, 0x400000, s18')
    srd(32, 's40', 's41', 's42')
    srd(36, 's12', 's13', WS_SIZE)
    KR = 64; VR = 96
    Q = 4
    ACCV = 8
    S = 16
    P = 24
    T = 32
    VM = 40; VL = 41; VMN = 42; VAL = 44
    VOFF = 46; VOFF2 = 47; VG = 48; VL16 = 49; VTMP = 50
    e(f'v_lshlrev_b32 v{VTMP}, 4, v1')
    e(f'buffer_load_dwordx4 v[{T}:{T+3}], v{VTMP}, s[28:31], 0 offen')
    e(f'v_lshrrev_b32 v{VG}, 4, v1')
    e(f'v_and_b32 v{VL16}, 15, v1')
    e(f'v_lshl_add_u32 v{VTMP}, v2, 2, v{VG}')
    e(f'v_lshlrev_b32 v{VTMP}, 13, v{VTMP}')
    e(f'v_lshl_add_u32 v{VTMP}, v{VL16}, 4, v{VTMP}')
    for i in range(8):
        e(f's_mov_b32 s43, {i*524288}')
        e(f'buffer_load_dwordx4 v[{VR+4*i}:{VR+4*i+3}], v{VTMP}, s[32:35], s43 offen')
    e(f'v_lshlrev_b32 v{VOFF}, 13, v2')
    e(f'v_lshl_add_u32 v{VOFF}, v1, 4, v{VOFF}')
    e(f'v_add_u32 v{VOFF2}, 4096, v{VOFF}')
    e('s_mov_b32 s44, 0')
    def kv_loads(R, srdb, soff):
        for i in range(8):
            vo = VOFF if i < 4 else VOFF2
            e(f'buffer_load_dwordx4 v[{R+4*i}:{R+4*i+3}], v{vo}, s[{srdb}:{srdb+3}], {soff} offen offset:{(i%4)*1024} {NT}')
    kv_loads(KR, 20, 's44')
    e('s_waitcnt vmcnt(16)')
    X = 16
    D = 24
    unpack8(T, X)
    e(f'v_add_f32 v{VTMP}, v{X}, v{X+1}')
    for j in range(2, 8):
        e(f'v_add_f32 v{VTMP}, v{VTMP}, v{X+j}')
    def wave_allreduce_sum(v, t):
        row_allreduce([v])
        cross_row_allreduce([v], [t])
    wave_allreduce_sum(VTMP, VTMP+1)
    e(f'v_mul_f32 v{VTMP}, {f2u(1.0/512):#x}, v{VTMP}')
    for j in range(8):
        e(f'v_sub_f32 v{D+j}, v{X+j}, v{VTMP}')
    e(f'v_mul_f32 v{VTMP+2}, v{D}, v{D}')
    for j in range(1, 8):
        e(f'v_fmac_f32 v{VTMP+2}, v{D+j}, v{D+j}')
    e('s_nop 1')
    wave_allreduce_sum(VTMP+2, VTMP+3)
    e(f'v_mul_f32 v{VTMP+2}, {f2u(1.0/512):#x}, v{VTMP+2}')
    bf16_round(VTMP+2, VTMP+3)
    bf16_round(VTMP, VTMP+3)
    e(f'v_add_f32 v{VTMP+2}, {EPS:#x}, v{VTMP+2}')
    bf16_round(VTMP+2, VTMP+3)
    e(f'v_sqrt_f32 v{VTMP+2}, v{VTMP+2}')
    e('s_nop 0')
    bf16_round(VTMP+2, VTMP+3)
    e(f'v_rcp_f32 v{VTMP+4}, v{VTMP+2}')
    e('s_nop 0')
    for j in range(8):
        e(f'v_sub_f32 v{D+j}, v{X+j}, v{VTMP}')
        bf16_round(D+j, VTMP+3)
        e(f'v_mul_f32 v{VTMP+5}, v{D+j}, v{VTMP+4}')
        e(f'v_fma_f32 v{VTMP+6}, -v{VTMP+5}, v{VTMP+2}, v{D+j}')
        e(f'v_fma_f32 v{D+j}, v{VTMP+6}, v{VTMP+4}, v{VTMP+5}')
        bf16_round(D+j, VTMP+3)
    e(f'v_lshlrev_b32 v{VTMP}, 5, v1')
    e(f'ds_write_b128 v{VTMP}, v[{D}:{D+3}] offset:{XN}')
    e(f'ds_write_b128 v{VTMP}, v[{D+4}:{D+7}] offset:{XN+16}')
    e('s_waitcnt lgkmcnt(0)')
    e('s_barrier')
    e(f'v_lshlrev_b32 v{VTMP}, 4, v2')
    e(f'v_lshl_add_u32 v{VTMP}, v{VG}, 2, v{VTMP}')
    for i in range(8):
        e(f'ds_read_b32 v{S+i}, v{VTMP} offset:{XN+i*256}')
    for j in range(8):
        e(f'v_mov_b32 v{ACCV+j}, 0')
    e('s_waitcnt vmcnt(8) lgkmcnt(0)')
    for i in range(8):
        unpack8(VR+4*i, T)
        e(f'v_mov_b32 v{VAL}, v{S+i}')
        e(f'v_mov_b32 v{VAL+1}, v{S+i}')
        for j in range(4):
            e(f'v_pk_fma_f32 v[{ACCV+2*j}:{ACCV+2*j+1}], v[{T+2*j}:{T+2*j+1}], v[{VAL}:{VAL+1}], v[{ACCV+2*j}:{ACCV+2*j+1}]')
    kv_loads(VR, 24, 's44')
    e('s_nop 1')
    cross_row_allreduce([ACCV+j for j in range(8)], [T+j for j in range(8)])
    e(f'v_lshlrev_b32 v{VTMP}, 9, v2')
    e(f'v_lshl_add_u32 v{VTMP}, v{VL16}, 5, v{VTMP}')
    e(f'ds_write_b128 v{VTMP}, v[{ACCV}:{ACCV+3}] offset:{QRED}')
    e(f'ds_write_b128 v{VTMP}, v[{ACCV+4}:{ACCV+7}] offset:{QRED+16}')
    e('s_waitcnt lgkmcnt(0)')
    e('s_barrier')
    e('s_cmp_ge_u32 s14, 2')
    e('s_cbranch_scc1 K1_QSKIP')
    e(f'v_lshlrev_b32 v{VTMP}, 2, v0')
    for w in range(16):
        e(f'ds_read_b32 v{S+w}, v{VTMP} offset:{QRED+w*512}')
    e('s_waitcnt lgkmcnt(0)')
    for w in range(1, 16):
        e(f'v_add_f32 v{S}, v{S}, v{S+w}')
    e(f'v_cvt_pk_bf16_f32 v{S}, v{S}, v{S}')
    e(f'v_lshlrev_b32 v{VTMP}, 1, v0')
    e(f'ds_write_b16 v{VTMP}, v{S} offset:{QB}')
    e('s_waitcnt lgkmcnt(0)')
    lab('K1_QSKIP')
    e('s_barrier')
    e(f'v_lshlrev_b32 v{VTMP}, 4, v{VL16}')
    e(f'ds_read_b128 v[{Q}:{Q+3}], v{VTMP} offset:{QB}')
    e(f'v_mov_b32 v{VM}, 0xff800000')
    e(f'v_mov_b32 v{VL}, 0')
    for j in range(8):
        e(f'v_mov_b32 v{ACCV+j}, 0')
    e(f's_mov_b32 s46, {SCALE:#x}')
    e(f's_mov_b32 s47, {SCALE:#x}')
    e(f's_mov_b32 s48, {L2E:#x}')
    e('s_waitcnt lgkmcnt(0)')
    lab('K1_LOOP')
    e('s_add_u32 s45, s44, 0x20000')
    e('s_waitcnt vmcnt(8)')
    for j in range(4):
        for i in range(8):
            src2 = '0' if j == 0 else f'v{S+i}'
            e(f'v_dot2_f32_bf16 v{S+i}, v{KR+4*i+j}, v{Q+j}, {src2}')
    kv_loads(KR, 20, 's45')
    row_allreduce([S+i for i in range(8)])
    for i in range(0, 8, 2):
        e(f'v_cvt_pk_bf16_f32 v{T+i}, v{S+i}, v{S+i+1}')
    for i in range(0, 8, 2):
        e(f'v_lshlrev_b32 v{S+i}, 16, v{T+i}')
        e(f'v_and_b32 v{S+i+1}, 0xffff0000, v{T+i}')
    for i in range(0, 8, 2):
        e(f'v_pk_mul_f32 v[{S+i}:{S+i+1}], v[{S+i}:{S+i+1}], s[46:47]')
    for i in range(0, 8, 2):
        e(f'v_cvt_pk_bf16_f32 v{T+i}, v{S+i}, v{S+i+1}')
    for i in range(0, 8, 2):
        e(f'v_lshlrev_b32 v{S+i}, 16, v{T+i}')
        e(f'v_and_b32 v{S+i+1}, 0xffff0000, v{T+i}')
    e(f'v_max3_f32 v{VMN}, v{S}, v{S+1}, v{VM}')
    e(f'v_max3_f32 v{T}, v{S+2}, v{S+3}, v{S+4}')
    e(f'v_max3_f32 v{T+1}, v{S+5}, v{S+6}, v{S+7}')
    e(f'v_max3_f32 v{VMN}, v{VMN}, v{T}, v{T+1}')
    e(f'v_mul_f32 v{T+2}, s48, v{VMN}')
    e(f'v_fma_f32 v{VAL}, v{VM}, s48, -v{T+2}')
    e(f'v_exp_f32 v{VAL}, v{VAL}')
    for i in range(8):
        e(f'v_fma_f32 v{P+i}, v{S+i}, s48, -v{T+2}')
    for i in range(8):
        e(f'v_exp_f32 v{P+i}, v{P+i}')
    e(f'v_mov_b32 v{VAL+1}, v{VAL}')
    e(f'v_mov_b32 v{VM}, v{VMN}')
    e(f'v_mul_f32 v{VL}, v{VL}, v{VAL}')
    for j in range(4):
        e(f'v_pk_mul_f32 v[{ACCV+2*j}:{ACCV+2*j+1}], v[{ACCV+2*j}:{ACCV+2*j+1}], v[{VAL}:{VAL+1}]')
    for i in range(8):
        e(f'v_add_f32 v{VL}, v{VL}, v{P+i}')
    e('s_waitcnt vmcnt(8)')
    for i in range(8):
        unpack8(VR+4*i, T)
        for j in range(4):
            pk_fma_bc(ACCV+2*j, T+2*j, P+i)
    kv_loads(VR, 24, 's45')
    e('s_mov_b32 s44, s45')
    e('s_cmp_lt_u32 s44, 0x100000')
    e('s_cbranch_scc1 K1_LOOP')
    e('s_waitcnt vmcnt(0)')
    e(f'v_lshl_add_u32 v{VTMP}, v2, 2, v{VG}')
    e(f'v_lshlrev_b32 v{VTMP+1}, 9, v{VTMP}')
    e(f'v_lshl_add_u32 v{VTMP+1}, v{VL16}, 5, v{VTMP+1}')
    e(f'ds_write_b128 v{VTMP+1}, v[{ACCV}:{ACCV+3}] offset:{ACC}')
    e(f'ds_write_b128 v{VTMP+1}, v[{ACCV+4}:{ACCV+7}] offset:{ACC+16}')
    e(f'v_lshlrev_b32 v{VTMP}, 2, v{VTMP}')
    e(f'ds_write_b32 v{VTMP}, v{VM} offset:{MB}')
    e(f'ds_write_b32 v{VTMP}, v{VL} offset:{LB}')
    e('s_waitcnt lgkmcnt(0)')
    e('s_barrier')
    e(f'v_mov_b32 v{VTMP}, 0')
    for i in range(16):
        e(f'ds_read_b128 v[{KR+4*i}:{KR+4*i+3}], v{VTMP} offset:{MB+16*i}')
    e(f'v_and_b32 v{VTMP+1}, 127, v0')
    e(f'v_lshrrev_b32 v{VTMP+2}, 7, v0')
    e(f'v_lshlrev_b32 v{VTMP+3}, 5, v{VTMP+2}')
    e(f'ds_read_b128 v[{S}:{S+3}], v{VTMP+3} offset:{MB}')
    e(f'ds_read_b128 v[{S+4}:{S+7}], v{VTMP+3} offset:{MB+16}')
    e(f'ds_read_b128 v[{P}:{P+3}], v{VTMP+3} offset:{LB}')
    e(f'ds_read_b128 v[{P+4}:{P+7}], v{VTMP+3} offset:{LB+16}')
    e(f'v_lshlrev_b32 v{VTMP+3}, 12, v{VTMP+2}')
    e(f'v_lshl_add_u32 v{VTMP+3}, v{VTMP+1}, 2, v{VTMP+3}')
    for j in range(8):
        e(f'ds_read_b32 v{T+j}, v{VTMP+3} offset:{ACC+j*512}')
    e('s_waitcnt lgkmcnt(0)')
    e(f'v_max_f32 v{VMN}, v{KR}, v{KR+1}')
    for i in range(2, 64, 2):
        e(f'v_max3_f32 v{VMN}, v{VMN}, v{KR+i}, v{KR+i+1}')
    e(f'v_mul_f32 v{VTMP+4}, s48, v{VMN}')
    for j in range(8):
        e(f'v_fma_f32 v{S+j}, v{S+j}, s48, -v{VTMP+4}')
    for j in range(8):
        e(f'v_exp_f32 v{S+j}, v{S+j}')
    e('s_nop 0')
    e(f'v_mul_f32 v{VTMP+5}, v{S}, v{T}')
    e(f'v_mul_f32 v{VTMP+6}, v{S}, v{P}')
    for j in range(1, 8):
        e(f'v_fmac_f32 v{VTMP+5}, v{S+j}, v{T+j}')
        e(f'v_fmac_f32 v{VTMP+6}, v{S+j}, v{P+j}')
    e(f'v_lshlrev_b32 v{VTMP+3}, 9, v{VTMP+2}')
    e(f'v_lshl_add_u32 v{VTMP+3}, v{VTMP+1}, 2, v{VTMP+3}')
    e(f'ds_write_b32 v{VTMP+3}, v{VTMP+5} offset:{RED2}')
    e(f'v_lshlrev_b32 v{VTMP+3}, 2, v{VTMP+2}')
    e(f'ds_write_b32 v{VTMP+3}, v{VTMP+6} offset:{LP}')
    e('s_waitcnt lgkmcnt(0)')
    e('s_barrier')
    e('s_cmp_ge_u32 s14, 2')
    e('s_cbranch_scc1 K1_DONE')
    e(f'v_lshlrev_b32 v{VTMP+3}, 2, v0')
    for j in range(8):
        e(f'ds_read_b32 v{T+j}, v{VTMP+3} offset:{RED2+j*512}')
    e(f'v_mov_b32 v{VTMP}, 0')
    e(f'ds_read_b128 v[{P}:{P+3}], v{VTMP} offset:{LP}')
    e(f'ds_read_b128 v[{P+4}:{P+7}], v{VTMP} offset:{LP+16}')
    e('s_waitcnt lgkmcnt(0)')
    for j in range(1, 8):
        e(f'v_add_f32 v{T}, v{T}, v{T+j}')
        e(f'v_add_f32 v{P}, v{P}, v{P+j}')
    e('s_lshl_b32 s43, s2, 9')
    e(f'buffer_store_dword v{T}, v{VTMP+3}, s[36:39], s43 offen offset:{PART_O}')
    e(f'v_mov_b32 v{VMN+1}, v{P}')
    e('s_lshl_b32 s43, s2, 3')
    e(f's_add_u32 s43, s43, {PART_ML}')
    e('v_cmp_eq_u32 vcc, 0, v0')
    e('s_and_saveexec_b64 s[50:51], vcc')
    e('s_cbranch_execz K1_DONE')
    e(f'buffer_store_dwordx2 v[{VMN}:{VMN+1}], v{VTMP}, s[36:39], s43 offen')
    lab('K1_DONE')
    kernel_end(K1, 128)

K2 = 'oproj_kernel'
def gen_k2():
    kernel_begin(K2)
    XO = 0; RED = 2048; LDS_TOTAL = RED + 1024
    global K2_LDS; K2_LDS = LDS_TOTAL
    e('s_cmp_ge_u32 s2, 256')
    e('s_cbranch_scc1 K2_DONE')
    e('s_load_dwordx2 s[4:5], s[0:1], 32')
    e('s_load_dwordx2 s[12:13], s[0:1], 88')
    e('v_and_b32 v1, 63, v0')
    e('v_lshrrev_b32 v2, 6, v0')
    e('s_and_b32 s14, s2, 15')
    e('s_lshr_b32 s15, s2, 4')
    e('s_waitcnt lgkmcnt(0)')
    e('s_lshl_b32 s16, s15, 18')
    e('s_lshl_b32 s17, s14, 6')
    e('s_add_u32 s16, s16, s17')
    e('s_add_u32 s40, s4, s16')
    e('s_addc_u32 s41, s5, 0')
    e('s_sub_u32 s42, 0x400000, s16')
    srd(20, 's40', 's41', 's42')
    srd(36, 's12', 's13', WS_SIZE)
    W = 32
    e('v_lshrrev_b32 v3, 2, v1')
    e('v_and_b32 v4, 3, v1')
    e('v_lshl_add_u32 v5, v2, 4, v3')
    e('v_lshlrev_b32 v6, 10, v5')
    e('v_lshl_add_u32 v6, v4, 4, v6')
    for i in range(4):
        e(f's_mov_b32 s43, {i*65536}')
        e(f'buffer_load_dwordx4 v[{W+4*i}:{W+4*i+3}], v6, s[20:23], s43 offen')
    e('v_lshrrev_b32 v7, 7, v0')
    e('v_and_b32 v8, 127, v0')
    e('v_lshlrev_b32 v9, 11, v7')
    e('v_lshl_add_u32 v9, v8, 2, v9')
    e('v_lshlrev_b32 v10, 5, v7')
    O = 48
    ML = 56
    for b in range(2):
        e(f's_lshl_b32 s43, s15, 12')
        e(f's_add_u32 s43, s43, {PART_O + b*65536}')
        for s in range(4):
            e(f'buffer_load_dword v{O+b*4+s}, v9, s[36:39], s43 offen offset:{s*512}')
        e(f's_lshl_b32 s44, s15, 6')
        e(f's_add_u32 s44, s44, {PART_ML + b*1024}')
        e(f'buffer_load_dwordx4 v[{ML+b*8}:{ML+b*8+3}], v10, s[36:39], s44 offen')
        e(f'buffer_load_dwordx4 v[{ML+b*8+4}:{ML+b*8+7}], v10, s[36:39], s44 offen offset:16')
    e(f's_mov_b32 s48, {L2E:#x}')
    e('s_waitcnt vmcnt(0)')
    for b in range(2):
        m = [ML+b*8+2*s for s in range(4)]
        l = [ML+b*8+2*s+1 for s in range(4)]
        e(f'v_max3_f32 v11, v{m[0]}, v{m[1]}, v{m[2]}')
        e(f'v_max_f32 v11, v11, v{m[3]}')
        e('v_mul_f32 v12, s48, v11')
        for s in range(4):
            e(f'v_fma_f32 v{m[s]}, v{m[s]}, s48, -v12')
        for s in range(4):
            e(f'v_exp_f32 v{m[s]}, v{m[s]}')
        e('s_nop 0')
        e(f'v_mul_f32 v13, v{m[0]}, v{l[0]}')
        e(f'v_mul_f32 v14, v{m[0]}, v{O+b*4}')
        for s in range(1, 4):
            e(f'v_fmac_f32 v13, v{m[s]}, v{l[s]}')
            e(f'v_fmac_f32 v14, v{m[s]}, v{O+b*4+s}')
        e('v_rcp_f32 v15, v13')
        e('s_nop 0')
        e('v_mul_f32 v16, v14, v15')
        e('v_fma_f32 v17, -v16, v13, v14')
        e('v_fma_f32 v16, v17, v15, v16')
        bf16_round(16, 17)
        e('v_lshlrev_b32 v18, 2, v0')
        e(f'ds_write_b32 v18, v16 offset:{XO+b*1024}')
    e('s_waitcnt lgkmcnt(0)')
    e('s_barrier')
    e('v_lshlrev_b32 v18, 2, v5')
    XS = 20
    for b in range(2):
        for i in range(4):
            e(f'ds_read_b32 v{XS+b*4+i}, v18 offset:{XO+b*1024+i*256}')
    A = 64
    T = 80
    for j in range(16):
        e(f'v_mov_b32 v{A+j}, 0')
    e('s_waitcnt lgkmcnt(0)')
    for i in range(4):
        unpack8(W+4*i, T)
        for b in range(2):
            for j in range(4):
                pk_fma_bc(A+b*8+2*j, T+2*j, XS+b*4+i)
    e('s_nop 1')
    for rot in (8, 4):
        for j in range(16):
            e(f'v_add_f32_dpp v{A+j}, v{A+j}, v{A+j} row_ror:{rot} row_mask:0xf bank_mask:0xf')
    e('s_nop 1')
    cross_row_allreduce([A+j for j in range(16)], [88+j for j in range(16)])
    e('v_lshlrev_b32 v18, 8, v2')
    e('v_lshl_add_u32 v18, v4, 5, v18')
    for b in range(2):
        e(f'ds_write_b128 v18, v[{A+b*8}:{A+b*8+3}] offset:{RED+b*128}')
        e(f'ds_write_b128 v18, v[{A+b*8+4}:{A+b*8+7}] offset:{RED+b*128+16}')
    e('s_waitcnt lgkmcnt(0)')
    e('s_barrier')
    e('v_cmp_gt_u32 vcc, 64, v0')
    e('s_and_saveexec_b64 s[50:51], vcc')
    e('s_cbranch_execz K2_DONE')
    e('v_lshlrev_b32 v18, 2, v0')
    for w in range(4):
        e(f'ds_read_b32 v{T+w}, v18 offset:{RED+w*256}')
    e('s_waitcnt lgkmcnt(0)')
    e(f'v_add_f32 v{T}, v{T}, v{T+1}')
    e(f'v_add_f32 v{T+2}, v{T+2}, v{T+3}')
    e(f'v_add_f32 v{T}, v{T}, v{T+2}')
    e('v_lshrrev_b32 v19, 5, v0')
    e('v_and_b32 v20, 31, v0')
    e('v_lshlrev_b32 v19, 11, v19')
    e('v_lshl_add_u32 v19, v20, 2, v19')
    e('s_lshl_b32 s43, s15, 12')
    e('s_lshl_b32 s44, s14, 7')
    e('s_add_u32 s43, s43, s44')
    e(f's_add_u32 s43, s43, {ATTN_PART}')
    e(f'buffer_store_dword v{T}, v19, s[36:39], s43 offen')
    lab('K2_DONE')
    kernel_end(K2, 104)

K3 = 'ffn1_kernel'
def gen_k3():
    kernel_begin(K3)
    HN = 0; WS1 = 4096; WS2 = WS1 + 64; RED = WS2 + 64; GU = RED + 2048; DRED = GU + 64; LDS_TOTAL = DRED + 16384
    global K3_LDS; K3_LDS = LDS_TOTAL
    e('s_cmp_ge_u32 s2, 224')
    e('s_cbranch_scc1 K3_DONE')
    e('s_load_dwordx2 s[4:5], s[0:1], 0')
    e('s_load_dwordx4 s[8:11], s[0:1], 48')
    e('s_load_dwordx2 s[6:7], s[0:1], 64')
    e('s_load_dwordx2 s[12:13], s[0:1], 88')
    e('v_and_b32 v1, 63, v0')
    e('v_lshrrev_b32 v2, 6, v0')
    e('s_waitcnt lgkmcnt(0)')
    e('s_lshl_b32 s16, s2, 4')
    e(f's_sub_u32 s42, {512*3584}, s16')
    e('s_add_u32 s40, s8, s16')
    e('s_addc_u32 s41, s9, 0')
    srd(20, 's40', 's41', 's42')
    e('s_add_u32 s40, s10, s16')
    e('s_addc_u32 s41, s11, 0')
    srd(24, 's40', 's41', 's42')
    e('s_lshl_b32 s16, s2, 13')
    e('s_add_u32 s40, s6, s16')
    e('s_addc_u32 s41, s7, 0')
    srd(28, 's40', 's41', 8192)
    srd(32, 's4', 's5', 2048)
    srd(36, 's12', 's13', WS_SIZE)
    WG = 96; WU = 104; WD = 112
    e('s_movk_i32 s43, 3584')
    e('v_mul_lo_u32 v3, v0, s43')
    e(f's_mov_b32 s44, {256*3584}')
    e(f'buffer_load_dwordx4 v[{WG}:{WG+3}], v3, s[20:23], 0 offen')
    e(f'buffer_load_dwordx4 v[{WG+4}:{WG+7}], v3, s[20:23], s44 offen')
    e(f'buffer_load_dwordx4 v[{WU}:{WU+3}], v3, s[24:27], 0 offen')
    e(f'buffer_load_dwordx4 v[{WU+4}:{WU+7}], v3, s[24:27], s44 offen')
    e('v_lshlrev_b32 v4, 4, v0')
    e(f'buffer_load_dwordx4 v[{WD}:{WD+3}], v4, s[28:31], 0 offen')
    e('s_movk_i32 s45, 4096')
    e(f'buffer_load_dwordx4 v[{WD+4}:{WD+7}], v4, s[28:31], s45 offen')
    AP = 32
    for kk in range(16):
        e(f's_mov_b32 s45, {ATTN_PART + kk*4096}')
        e(f'buffer_load_dwordx4 v[{AP+4*kk}:{AP+4*kk+3}], v4, s[36:39], s45 offen')
    e('v_lshlrev_b32 v5, 3, v0')
    e('buffer_load_dwordx2 v[6:7], v5, s[32:35], 0 offen')
    e('s_waitcnt vmcnt(0)')
    for kk in range(1, 16):
        for j in range(4):
            e(f'v_add_f32 v{AP+j}, v{AP+j}, v{AP+4*kk+j}')
    H = 8
    e(f'v_lshlrev_b32 v{H}, 16, v6')
    e(f'v_and_b32 v{H+1}, 0xffff0000, v6')
    e(f'v_lshlrev_b32 v{H+2}, 16, v7')
    e(f'v_and_b32 v{H+3}, 0xffff0000, v7')
    for j in range(4):
        bf16_round(AP+j, 12)
        e(f'v_add_f32 v{H+j}, v{H+j}, v{AP+j}')
        bf16_round(H+j, 12)
    e('s_cmp_lg_u32 s2, 0')
    e('s_cbranch_scc1 K3_NOH')
    e(f's_mov_b32 s45, {H_BUF}')
    e(f'buffer_store_dwordx4 v[{H}:{H+3}], v4, s[36:39], s45 offen')
    lab('K3_NOH')
    e(f'v_add_f32 v13, v{H}, v{H+1}')
    e(f'v_add_f32 v14, v{H+2}, v{H+3}')
    e('v_add_f32 v13, v13, v14')
    def wave_allreduce_sum(v, t):
        row_allreduce([v])
        cross_row_allreduce([v], [t])
    wave_allreduce_sum(13, 14)
    e('v_lshlrev_b32 v15, 2, v2')
    e(f'ds_write_b32 v15, v13 offset:{WS1}')
    e('s_waitcnt lgkmcnt(0)')
    e('s_barrier')
    e('v_and_b32 v16, 2, v2')
    e('v_lshlrev_b32 v16, 2, v16')
    e(f'ds_read_b64 v[18:19], v16 offset:{WS1}')
    e('s_waitcnt lgkmcnt(0)')
    e('v_add_f32 v13, v18, v19')
    e(f'v_mul_f32 v13, {f2u(1.0/512):#x}, v13')
    for j in range(4):
        e(f'v_sub_f32 v{20+j}, v{H+j}, v13')
    e('v_mul_f32 v24, v20, v20')
    for j in range(1, 4):
        e(f'v_fmac_f32 v24, v{20+j}, v{20+j}')
    e('s_nop 1')
    wave_allreduce_sum(24, 14)
    e(f'ds_write_b32 v15, v24 offset:{WS2}')
    e('s_waitcnt lgkmcnt(0)')
    e('s_barrier')
    e(f'ds_read_b64 v[18:19], v16 offset:{WS2}')
    e('s_waitcnt lgkmcnt(0)')
    e('v_add_f32 v24, v18, v19')
    e(f'v_mul_f32 v24, {f2u(1.0/512):#x}, v24')
    bf16_round(24, 12)
    bf16_round(13, 12)
    e(f'v_add_f32 v24, {EPS:#x}, v24')
    bf16_round(24, 12)
    e('v_sqrt_f32 v24, v24')
    e('s_nop 0')
    bf16_round(24, 12)
    e('v_rcp_f32 v25, v24')
    e('s_nop 0')
    for j in range(4):
        e(f'v_sub_f32 v{20+j}, v{H+j}, v13')
        bf16_round(20+j, 12)
        e(f'v_mul_f32 v26, v{20+j}, v25')
        e(f'v_fma_f32 v27, -v26, v24, v{20+j}')
        e(f'v_fma_f32 v{20+j}, v27, v25, v26')
        bf16_round(20+j, 12)
    e(f'ds_write_b128 v4, v[20:23] offset:{HN}')
    e('s_waitcnt lgkmcnt(0)')
    e('s_barrier')
    e('v_lshlrev_b32 v15, 2, v0')
    HS = 20
    for b in range(2):
        for r in range(2):
            e(f'ds_read_b32 v{HS+b*2+r}, v15 offset:{HN+b*2048+r*1024}')
    A = 32
    T = 64
    for j in range(32):
        e(f'v_mov_b32 v{A+j}, 0')
    e('s_waitcnt lgkmcnt(0)')
    for mat, WR in enumerate((WG, WU)):
        for r in range(2):
            unpack8(WR+4*r, T)
            for b in range(2):
                for j in range(4):
                    a = A + mat*16 + b*8 + 2*j
                    pk_fma_bc(a, T+2*j, HS+b*2+r)
    e('s_nop 1')
    row_allreduce([A+j for j in range(32)])
    e('v_lshrrev_b32 v16, 4, v0')
    e('v_lshlrev_b32 v16, 7, v16')
    for j in range(8):
        e(f'ds_write_b128 v16, v[{A+4*j}:{A+4*j+3}] offset:{RED+16*j}')
    e('s_waitcnt lgkmcnt(0)')
    e('s_barrier')
    e('v_cmp_gt_u32 vcc, 16, v0')
    e('s_and_saveexec_b64 s[50:51], vcc')
    e('s_cbranch_execz K3_GUSKIP')
    for p in range(16):
        e(f'ds_read_b32 v{A+p}, v15 offset:{RED+p*128}')
        e(f'ds_read_b32 v{A+16+p}, v15 offset:{RED+p*128+64}')
    e('s_waitcnt lgkmcnt(0)')
    for p in range(1, 16):
        e(f'v_add_f32 v{A}, v{A}, v{A+p}')
        e(f'v_add_f32 v{A+16}, v{A+16}, v{A+16+p}')
    bf16_round(A, 12)
    bf16_round(A+16, 12)
    e(f's_mov_b32 s48, {L2E:#x}')
    e(f'v_mul_f32 v26, s48, v{A}')
    e('v_exp_f32 v26, -v26')
    e('s_nop 0')
    e('v_add_f32 v26, 1.0, v26')
    e('v_rcp_f32 v27, v26')
    e('s_nop 0')
    e(f'v_mul_f32 v28, v{A}, v27')
    e(f'v_fma_f32 v29, -v28, v26, v{A}')
    e('v_fma_f32 v28, v29, v27, v28')
    bf16_round(28, 12)
    e(f'v_mul_f32 v28, v28, v{A+16}')
    bf16_round(28, 12)
    e(f'ds_write_b32 v15, v28 offset:{GU}')
    e('s_waitcnt lgkmcnt(0)')
    lab('K3_GUSKIP')
    e('s_mov_b64 exec, -1')
    e('s_barrier')
    e('v_lshlrev_b32 v16, 2, v2')
    for b in range(2):
        for i in range(2):
            e(f'ds_read_b32 v{HS+b*2+i}, v16 offset:{GU+b*32+i*16}')
    for j in range(16):
        e(f'v_mov_b32 v{A+j}, 0')
    e('s_waitcnt lgkmcnt(0)')
    for i in range(2):
        unpack8(WD+4*i, T)
        for b in range(2):
            for j in range(4):
                a = A + b*8 + 2*j
                pk_fma_bc(a, T+2*j, HS+b*2+i)
    e('v_lshlrev_b32 v16, 12, v2')
    e('v_lshl_add_u32 v16, v1, 5, v16')
    for b in range(2):
        e(f'ds_write_b128 v16, v[{A+b*8}:{A+b*8+3}] offset:{DRED+b*2048}')
        e(f'ds_write_b128 v16, v[{A+b*8+4}:{A+b*8+7}] offset:{DRED+b*2048+16}')
    e('s_waitcnt lgkmcnt(0)')
    e('s_barrier')
    for w in range(4):
        e(f'ds_read_b128 v[{T+4*w}:{T+4*w+3}], v4 offset:{DRED+w*4096}')
    e('s_waitcnt lgkmcnt(0)')
    for w in range(1, 4):
        for j in range(4):
            e(f'v_add_f32 v{T+j}, v{T+j}, v{T+4*w+j}')
    e('s_lshl_b32 s45, s2, 12')
    e(f's_add_u32 s45, s45, {DOWN_PART}')
    e(f'buffer_store_dwordx4 v[{T}:{T+3}], v4, s[36:39], s45 offen')
    lab('K3_DONE')
    kernel_end(K3, 120)

K4 = 'ffn2_kernel'
def gen_k4():
    kernel_begin(K4)
    RED = 0; LDS_TOTAL = 4096
    global K4_LDS; K4_LDS = LDS_TOTAL
    e('s_cmp_ge_u32 s2, 32')
    e('s_cbranch_scc1 K4_DONE')
    e('s_load_dwordx2 s[4:5], s[0:1], 72')
    e('s_load_dwordx2 s[12:13], s[0:1], 88')
    e('s_waitcnt lgkmcnt(0)')
    srd(20, 's4', 's5', 2048)
    srd(36, 's12', 's13', WS_SIZE)
    e('v_and_b32 v1, 7, v0')
    e('v_lshrrev_b32 v2, 3, v0')
    e('s_movk_i32 s43, 28672')
    e('v_mul_lo_u32 v3, v2, s43')
    e('v_lshl_add_u32 v3, v1, 4, v3')
    e('s_lshl_b32 s44, s2, 7')
    for i in range(7):
        e(f's_add_u32 s45, s44, {DOWN_PART + i*4096}')
        e(f'buffer_load_dwordx4 v[{8+4*i}:{8+4*i+3}], v3, s[36:39], s45 offen')
    e('v_lshlrev_b32 v4, 2, v0')
    e(f's_add_u32 s45, s44, {H_BUF}')
    e('buffer_load_dword v5, v4, s[36:39], s45 offen')
    e('s_waitcnt vmcnt(0)')
    for i in range(1, 7):
        for j in range(4):
            e(f'v_add_f32 v{8+j}, v{8+j}, v{8+4*i+j}')
    e('v_lshlrev_b32 v6, 4, v0')
    e(f'ds_write_b128 v6, v[8:11] offset:{RED}')
    e('s_waitcnt lgkmcnt(0)')
    e('s_barrier')
    e('v_cmp_gt_u32 vcc, 32, v0')
    e('s_and_saveexec_b64 s[50:51], vcc')
    e('s_cbranch_execz K4_DONE')
    for p in range(32):
        e(f'ds_read_b32 v{8+p}, v4 offset:{RED+p*128}')
    e('s_waitcnt lgkmcnt(0)')
    for p in range(1, 32):
        e(f'v_add_f32 v8, v8, v{8+p}')
    bf16_round(8, 7)
    e('v_add_f32 v8, v8, v5')
    e('v_cvt_pk_bf16_f32 v8, v8, v8')
    e('v_lshlrev_b32 v6, 1, v0')
    e('s_lshl_b32 s45, s2, 6')
    e('buffer_store_short v8, v6, s[20:23], s45 offen')
    lab('K4_DONE')
    kernel_end(K4, 48)

gen_k1(); gen_k2(); gen_k3(); gen_k4()

hdr = list(HDR)
hdr.append(f'; @launch kernel={K1} grid=(256,1,1) block=(1024,1,1) lds={K1_LDS}')
hdr.append(f'; @launch kernel={K2} grid=(256,1,1) block=(256,1,1) lds={K2_LDS}')
hdr.append(f'; @launch kernel={K3} grid=(224,1,1) block=(256,1,1) lds={K3_LDS}')
hdr.append(f'; @launch kernel={K4} grid=(32,1,1) block=(256,1,1) lds={K4_LDS}')
hdr.append('.amdgcn_target "amdgcn-amd-amdhsa--gfx950"')
txt = '\n'.join(hdr) + '\n' + '\n'.join(out) + '\n'
txt += '.section .rodata,"a"\n'
for name, vg, sg in descs:
    txt += f'''.p2align 6
.amdhsa_kernel {name}
  .amdhsa_next_free_vgpr {vg}
  .amdhsa_next_free_sgpr {sg}
  .amdhsa_accum_offset {(vg+3)//4*4}
  .amdhsa_group_segment_fixed_size 0
  .amdhsa_kernarg_size 96
  .amdhsa_user_sgpr_count 2
  .amdhsa_user_sgpr_kernarg_segment_ptr 1
  .amdhsa_system_sgpr_workgroup_id_x 1
  .amdhsa_float_denorm_mode_32 3
.end_amdhsa_kernel
'''
open(sys.argv[1] if len(sys.argv) > 1 else 'sequential_preLN__mha_block_cached__swiglu_ffn__decode.s', 'w').write(txt)
```

```python
import struct, sys, os

HDR = open('sequential_preLN__mha_block_cached__swiglu_ffn__decode.s.ref').read().split('\n')
HDR = [l for l in HDR if l.startswith(';') and '@launch' not in l and 'Override' not in l and 'grid=ceil' not in l]
SLEEP = int(os.environ.get('SLEEP', '2'))

def f2u(x):
    return struct.unpack('<I', struct.pack('<f', x))[0]

L2E = f2u(1.4426950408889634)
SCALE = f2u(128 ** -0.5)
EPS = f2u(1e-5)
INV512 = f2u(1.0 / 512)

PART_O = 0
PART_ML = 0x40000
ATTN_PART = 0x80000
GU_BUF = 0xC0000
WS_SIZE = 0x100000
CNT_A = 0; CNT_B = 64; CNT_C = 128

out = []
def e(s):
    out.append('    ' + s)
def lab(s):
    out.append(s + ':')

def srd(d, base_lo, base_hi, nrec):
    e(f's_mov_b32 s{d}, {base_lo}')
    e(f's_and_b32 s{d+1}, {base_hi}, 0xffff')
    e(f's_mov_b32 s{d+2}, {nrec}')
    e(f's_mov_b32 s{d+3}, 0x00020000')

def bf16_round(v, tmp):
    e(f'v_cvt_pk_bf16_f32 v{tmp}, v{v}, v{v}')
    e(f'v_lshlrev_b32 v{v}, 16, v{tmp}')

def row_reduce(vals, rots=(8, 4, 2, 1)):
    for rot in rots:
        if len(vals) < 3:
            e('s_nop 1')
        for v in vals:
            e(f'v_add_f32_dpp v{v}, v{v}, v{v} row_ror:{rot} row_mask:0xf bank_mask:0xf')
    e('s_nop 1')

def cross_row_allreduce(vals, tmps):
    for ins in ('v_permlane16_swap_b32', 'v_permlane32_swap_b32'):
        for v, t in zip(vals, tmps):
            e(f'v_mov_b32 v{t}, v{v}')
        e('s_nop 1')
        for v, t in zip(vals, tmps):
            e(f'{ins} v{v}, v{t}')
        e('s_nop 1')
        for v, t in zip(vals, tmps):
            e(f'v_add_f32 v{v}, v{v}, v{t}')
        e('s_nop 1')

def unpack8(src, dst):
    for j in range(4):
        e(f'v_lshlrev_b32 v{dst+2*j}, 16, v{src+j}')
        e(f'v_and_b32 v{dst+2*j+1}, 0xffff0000, v{src+j}')

def pk_bc(op, acc, src, sc):
    if sc % 2 == 0:
        pair = f'v[{sc}:{sc+1}]'; sel = 0
    else:
        pair = f'v[{sc-1}:{sc}]'; sel = 1
    if op == 'fma':
        mods = 'op_sel_hi:[1,0,1]' if sel == 0 else 'op_sel:[0,1,0] op_sel_hi:[1,1,1]'
        e(f'v_pk_fma_f32 v[{acc}:{acc+1}], v[{src}:{src+1}], {pair}, v[{acc}:{acc+1}] {mods}')
    else:
        mods = 'op_sel_hi:[1,0]' if sel == 0 else 'op_sel:[0,1] op_sel_hi:[1,1]'
        e(f'v_pk_mul_f32 v[{acc}:{acc+1}], v[{src}:{src+1}], {pair} {mods}')

NAME = 'sequential_preLN__mha_block_cached__swiglu_ffn__decode_kernel'
out.append('.text')
out.append(f'.globl {NAME}')
out.append('.p2align 8')
out.append(f'.type {NAME},@function')
lab(NAME)

XN = 0; QRED = 2048; QB = 10240; MB = 10496; LB = 10752; ACC = 11008; RED2 = 43776; LP = 47872
XO = 47936; REDB = 49984; HN = 54080; HB = 58176; WS1 = 62272; WS2 = 62336; REDC = 62400; REDD = 64448
LDS_TOTAL = 65472

LANE = 1; WAVE = 2; VX = 3
Q = 4; ACCV = 8; S = 16; P = 24; T = 32
VM = 40; VL = 41; VMN = 42; VAL = 44; VOFF = 46; VOFF2 = 47
WO = 48; WGU = 52; WD = 56
KR = 64; VR = 96
SK = 20; SV = 24; SX = 28; SWQ = 32; SWS = 36; SDBG = 40; SWO = 44; SG = 48; SU = 52; SD = 56; SOUT = 60
e('s_cmp_ge_u32 s2, 256')
e('s_cbranch_scc1 L_DONE')
e('s_load_dwordx16 s[64:79], s[0:1], 0')
e('s_load_dwordx8 s[80:87], s[0:1], 64')
e(f'v_and_b32 v{LANE}, 63, v0')
e(f'v_lshrrev_b32 v{WAVE}, 6, v0')
e('s_nop 0')
e(f'v_readfirstlane_b32 s14, v{WAVE}')
e('s_lshr_b32 s15, s2, 2')
e('s_lshr_b32 s16, s15, 5')
e('s_and_b32 s17, s15, 31')
e('s_and_b32 s90, s2, 15')
e('s_lshr_b32 s91, s2, 4')
e('s_waitcnt lgkmcnt(0)')
e('s_lshl_b32 s18, s2, 20')
e('s_lshr_b32 s19, s2, 12')
e('s_add_u32 s88, s66, s18')
e('s_addc_u32 s89, s67, s19')
srd(SK, 's88', 's89', 0x100000)
e('s_add_u32 s88, s68, s18')
e('s_addc_u32 s89, s69, s19')
srd(SV, 's88', 's89', 0x100000)
e('s_lshl_b32 s18, s16, 10')
e('s_add_u32 s88, s64, s18')
e('s_addc_u32 s89, s65, 0')
srd(SX, 's88', 's89', 1024)
e('s_lshl_b32 s18, s17, 8')
e('s_add_u32 s88, s70, s18')
e('s_addc_u32 s89, s71, 0')
e('s_sub_u32 s19, 0x400000, s18')
srd(SWQ, 's88', 's89', 's19')
srd(SWS, 's86', 's87', WS_SIZE)
srd(SDBG, 's84', 's85', 256)
e('s_lshl_b32 s18, s91, 18')
e('s_lshl_b32 s19, s90, 6')
e('s_add_u32 s18, s18, s19')
e('s_add_u32 s88, s72, s18')
e('s_addc_u32 s89, s73, 0')
e('s_sub_u32 s19, 0x400000, s18')
srd(SWO, 's88', 's89', 's19')
e('s_lshl_b32 s18, s2, 4')
e(f's_sub_u32 s19, {512*3584}, s18')
e('s_cmp_lt_u32 s2, 224')
e('s_cselect_b32 s19, s19, 0')
e('s_add_u32 s88, s76, s18')
e('s_addc_u32 s89, s77, 0')
srd(SG, 's88', 's89', 's19')
e('s_add_u32 s88, s78, s18')
e('s_addc_u32 s89, s79, 0')
srd(SU, 's88', 's89', 's19')
e(f's_sub_u32 s19, {1792*1024}, s18')
e('s_cmp_lt_u32 s2, 64')
e('s_cselect_b32 s19, s19, 0')
e('s_add_u32 s88, s80, s18')
e('s_addc_u32 s89, s81, 0')
srd(SD, 's88', 's89', 's19')
srd(SOUT, 's82', 's83', 2048)

e(f'v_lshlrev_b32 v{VX}, 4, v{LANE}')
e(f'buffer_load_dwordx4 v[{T}:{T+3}], v{VX}, s[{SX}:{SX+3}], 0 offen')
e(f'v_lshrrev_b32 v{VX}, 4, v0')
e(f'v_lshlrev_b32 v{VX}, 13, v{VX}')
e(f'v_and_b32 v{VM}, 15, v0')
e(f'v_lshl_add_u32 v{VX}, v{VM}, 4, v{VX}')
for i in range(8):
    e(f's_mov_b32 s93, {i*524288}')
    e(f'buffer_load_dwordx4 v[{VR+4*i}:{VR+4*i+3}], v{VX}, s[{SWQ}:{SWQ+3}], s93 offen')
e(f'v_lshlrev_b32 v{VOFF}, 13, v{WAVE}')
e(f'v_lshl_add_u32 v{VOFF}, v{LANE}, 4, v{VOFF}')
e(f'v_add_u32 v{VOFF2}, 4096, v{VOFF}')
e('s_mov_b32 s94, 0')
def kv_loads(R, srdb, soff):
    for i in range(8):
        vo = VOFF if i < 4 else VOFF2
        e(f'buffer_load_dwordx4 v[{R+4*i}:{R+4*i+3}], v{vo}, s[{srdb}:{srdb+3}], {soff} offen offset:{(i%4)*1024} nt')
kv_loads(KR, SK, 's94')
e(f'v_lshrrev_b32 v{VX}, 2, v0')
e(f'v_lshlrev_b32 v{VX}, 10, v{VX}')
e(f'v_and_b32 v{VM}, 3, v0')
e(f'v_lshl_add_u32 v{VX}, v{VM}, 4, v{VX}')
e(f'buffer_load_dwordx4 v[{WO}:{WO+3}], v{VX}, s[{SWO}:{SWO+3}], 0 offen')
e(f'v_lshrrev_b32 v{VX}, 1, v0')
e('s_movk_i32 s93, 3584')
e(f'v_mul_lo_u32 v{VX}, v{VX}, s93')
e('s_mov_b32 s92, 0x55555555')
e('s_mov_b32 s93, 0x55555555')
e('s_mov_b64 exec, s[92:93]')
e(f'buffer_load_dwordx4 v[{WGU}:{WGU+3}], v{VX}, s[{SG}:{SG+3}], 0 offen')
e('s_not_b64 exec, exec')
e(f'buffer_load_dwordx4 v[{WGU}:{WGU+3}], v{VX}, s[{SU}:{SU+3}], 0 offen')
e('s_mov_b64 exec, -1')
e(f'v_lshlrev_b32 v{VX}, 10, v0')
e('s_mov_b32 s93, 0x100000')
e(f'buffer_load_dwordx4 v[{WD}:{WD+3}], v{VX}, s[{SD}:{SD+3}], 0 offen')
e(f'buffer_load_dwordx4 v[{WD+4}:{WD+7}], v{VX}, s[{SD}:{SD+3}], s93 offen')

e('s_waitcnt vmcnt(21)')
X = S; D = P
t0, t1, t2, t3, t4, t5, t6 = 40, 41, 42, 43, 44, 45, 36
unpack8(T, X)
e(f'v_add_f32 v{t0}, v{X}, v{X+1}')
for j in range(2, 8):
    e(f'v_add_f32 v{t0}, v{t0}, v{X+j}')
def wave_allreduce_sum(v, t):
    row_reduce([v])
    cross_row_allreduce([v], [t])
def ln_finish(mean, var, tmp, rcp):
    bf16_round(var, tmp)
    bf16_round(mean, tmp)
    e(f'v_add_f32 v{var}, {EPS:#x}, v{var}')
    bf16_round(var, tmp)
    e(f'v_sqrt_f32 v{var}, v{var}')
    e('s_nop 0')
    bf16_round(var, tmp)
    e(f'v_rcp_f32 v{rcp}, v{var}')
    e('s_nop 0')
def ln_elem(dst, src, mean, den, rcp, ta, tb, tc):
    e(f'v_sub_f32 v{dst}, v{src}, v{mean}')
    bf16_round(dst, ta)
    e(f'v_mul_f32 v{tb}, v{dst}, v{rcp}')
    e(f'v_fma_f32 v{tc}, -v{tb}, v{den}, v{dst}')
    e(f'v_fma_f32 v{dst}, v{tc}, v{rcp}, v{tb}')
    bf16_round(dst, ta)
wave_allreduce_sum(t0, t1)
e(f'v_mul_f32 v{t0}, {INV512:#x}, v{t0}')
for j in range(8):
    e(f'v_sub_f32 v{D+j}, v{X+j}, v{t0}')
e(f'v_mul_f32 v{t2}, v{D}, v{D}')
for j in range(1, 8):
    e(f'v_fmac_f32 v{t2}, v{D+j}, v{D+j}')
e('s_nop 1')
wave_allreduce_sum(t2, t1)
e(f'v_mul_f32 v{t2}, {INV512:#x}, v{t2}')
ln_finish(t0, t2, t1, t3)
for j in range(8):
    ln_elem(D+j, X+j, t0, t2, t3, t1, t4, t5)
e(f'v_lshlrev_b32 v{VX}, 5, v{LANE}')
e(f'ds_write_b128 v{VX}, v[{D}:{D+3}] offset:{XN}')
e(f'ds_write_b128 v{VX}, v[{D+4}:{D+7}] offset:{XN+16}')
e('s_waitcnt lgkmcnt(0)')
e('s_barrier')
e(f'v_lshrrev_b32 v{VX}, 4, v0')
e(f'v_lshlrev_b32 v{VX}, 2, v{VX}')
for i in range(8):
    e(f'ds_read_b32 v{S+i}, v{VX} offset:{XN+i*256}')
e('s_waitcnt vmcnt(13) lgkmcnt(0)')
for i in range(8):
    unpack8(VR+4*i, T)
    for j in range(4):
        pk_bc('mul' if i == 0 else 'fma', ACCV+2*j, T+2*j, S+i)
kv_loads(VR, SV, 's94')
e('s_nop 1')
cross_row_allreduce([ACCV+j for j in range(8)], [T+j for j in range(8)])
e(f'v_lshlrev_b32 v{VX}, 9, v{WAVE}')
e(f'v_and_b32 v{t0}, 15, v0')
e(f'v_lshl_add_u32 v{VX}, v{t0}, 5, v{VX}')
e(f'ds_write_b128 v{VX}, v[{ACCV}:{ACCV+3}] offset:{QRED}')
e(f'ds_write_b128 v{VX}, v[{ACCV+4}:{ACCV+7}] offset:{QRED+16}')
e('s_waitcnt lgkmcnt(0)')
e('s_barrier')
e('s_cmp_ge_u32 s14, 2')
e('s_cbranch_scc1 L_QSKIP')
e(f'v_lshlrev_b32 v{VX}, 2, v0')
for w in range(16):
    e(f'ds_read_b32 v{S+w}, v{VX} offset:{QRED+w*512}')
e('s_waitcnt lgkmcnt(0)')
for w in range(1, 16):
    e(f'v_add_f32 v{S}, v{S}, v{S+w}')
e(f'v_cvt_pk_bf16_f32 v{S}, v{S}, v{S}')
e(f'v_lshlrev_b32 v{VX}, 1, v0')
e(f'ds_write_b16 v{VX}, v{S} offset:{QB}')
e('s_waitcnt lgkmcnt(0)')
lab('L_QSKIP')
e('s_barrier')
e(f'v_and_b32 v{VX}, 15, v0')
e(f'v_lshlrev_b32 v{VX}, 4, v{VX}')
e(f'ds_read_b128 v[{Q}:{Q+3}], v{VX} offset:{QB}')
e(f'v_mov_b32 v{VM}, 0xff800000')
e(f'v_mov_b32 v{VL}, 0')
for j in range(8):
    e(f'v_mov_b32 v{ACCV+j}, 0')
e(f's_mov_b32 s96, {SCALE:#x}')
e(f's_mov_b32 s97, {SCALE:#x}')
e(f's_mov_b32 s98, {L2E:#x}')
e('s_waitcnt lgkmcnt(0)')
lab('L_LOOP')
e('s_add_u32 s95, s94, 0x20000')
e('s_waitcnt vmcnt(8)')
for j in range(4):
    for i in range(8):
        src2 = '0' if j == 0 else f'v{S+i}'
        e(f'v_dot2_f32_bf16 v{S+i}, v{KR+4*i+j}, v{Q+j}, {src2}')
kv_loads(KR, SK, 's95')
row_reduce([S+i for i in range(8)])
for i in range(0, 8, 2):
    e(f'v_cvt_pk_bf16_f32 v{T+i}, v{S+i}, v{S+i+1}')
for i in range(0, 8, 2):
    e(f'v_lshlrev_b32 v{S+i}, 16, v{T+i}')
    e(f'v_and_b32 v{S+i+1}, 0xffff0000, v{T+i}')
for i in range(0, 8, 2):
    e(f'v_pk_mul_f32 v[{S+i}:{S+i+1}], v[{S+i}:{S+i+1}], s[96:97]')
for i in range(0, 8, 2):
    e(f'v_cvt_pk_bf16_f32 v{T+i}, v{S+i}, v{S+i+1}')
for i in range(0, 8, 2):
    e(f'v_lshlrev_b32 v{S+i}, 16, v{T+i}')
    e(f'v_and_b32 v{S+i+1}, 0xffff0000, v{T+i}')
e(f'v_max3_f32 v{VMN}, v{S}, v{S+1}, v{VM}')
e(f'v_max3_f32 v{T}, v{S+2}, v{S+3}, v{S+4}')
e(f'v_max3_f32 v{T+1}, v{S+5}, v{S+6}, v{S+7}')
e(f'v_max3_f32 v{VMN}, v{VMN}, v{T}, v{T+1}')
e(f'v_mul_f32 v{T+2}, s98, v{VMN}')
e(f'v_fma_f32 v{VAL}, v{VM}, s98, -v{T+2}')
e(f'v_exp_f32 v{VAL}, v{VAL}')
for i in range(8):
    e(f'v_fma_f32 v{P+i}, v{S+i}, s98, -v{T+2}')
for i in range(8):
    e(f'v_exp_f32 v{P+i}, v{P+i}')
e(f'v_mov_b32 v{VAL+1}, v{VAL}')
e(f'v_mov_b32 v{VM}, v{VMN}')
e(f'v_mul_f32 v{VL}, v{VL}, v{VAL}')
for j in range(4):
    e(f'v_pk_mul_f32 v[{ACCV+2*j}:{ACCV+2*j+1}], v[{ACCV+2*j}:{ACCV+2*j+1}], v[{VAL}:{VAL+1}]')
for i in range(8):
    e(f'v_add_f32 v{VL}, v{VL}, v{P+i}')
e('s_waitcnt vmcnt(8)')
for i in range(8):
    unpack8(VR+4*i, T)
    for j in range(4):
        pk_bc('fma', ACCV+2*j, T+2*j, P+i)
kv_loads(VR, SV, 's95')
e('s_mov_b32 s94, s95')
e('s_cmp_lt_u32 s94, 0x100000')
e('s_cbranch_scc1 L_LOOP')

e('s_waitcnt vmcnt(0)')
e(f'v_lshrrev_b32 v{VX}, 4, v0')
e(f'v_lshlrev_b32 v{VAL}, 9, v{VX}')
e(f'v_and_b32 v{VAL+1}, 15, v0')
e(f'v_lshl_add_u32 v{VAL}, v{VAL+1}, 5, v{VAL}')
e(f'ds_write_b128 v{VAL}, v[{ACCV}:{ACCV+3}] offset:{ACC}')
e(f'ds_write_b128 v{VAL}, v[{ACCV+4}:{ACCV+7}] offset:{ACC+16}')
e(f'v_lshlrev_b32 v{VX}, 2, v{VX}')
e(f'ds_write_b32 v{VX}, v{VM} offset:{MB}')
e(f'ds_write_b32 v{VX}, v{VL} offset:{LB}')
e('s_waitcnt lgkmcnt(0)')
e('s_barrier')
c_, part_, a_ = 40, 41, 44
e(f'v_mov_b32 v{VX}, 0')
for i in range(16):
    e(f'ds_read_b128 v[{KR+4*i}:{KR+4*i+3}], v{VX} offset:{MB+16*i}')
e(f'v_and_b32 v{c_}, 127, v0')
e(f'v_lshrrev_b32 v{part_}, 7, v0')
e(f'v_lshlrev_b32 v{a_}, 5, v{part_}')
e(f'ds_read_b128 v[{S}:{S+3}], v{a_} offset:{MB}')
e(f'ds_read_b128 v[{S+4}:{S+7}], v{a_} offset:{MB+16}')
e(f'ds_read_b128 v[{P}:{P+3}], v{a_} offset:{LB}')
e(f'ds_read_b128 v[{P+4}:{P+7}], v{a_} offset:{LB+16}')
e(f'v_lshlrev_b32 v{a_}, 12, v{part_}')
e(f'v_lshl_add_u32 v{a_}, v{c_}, 2, v{a_}')
for j in range(8):
    e(f'ds_read_b32 v{T+j}, v{a_} offset:{ACC+j*512}')
e('s_waitcnt lgkmcnt(0)')
e(f'v_max_f32 v{VMN}, v{KR}, v{KR+1}')
for i in range(2, 64, 2):
    e(f'v_max3_f32 v{VMN}, v{VMN}, v{KR+i}, v{KR+i+1}')
e(f'v_mul_f32 v{ACCV}, s98, v{VMN}')
for j in range(8):
    e(f'v_fma_f32 v{S+j}, v{S+j}, s98, -v{ACCV}')
for j in range(8):
    e(f'v_exp_f32 v{S+j}, v{S+j}')
e('s_nop 0')
e(f'v_mul_f32 v{ACCV+1}, v{S}, v{T}')
e(f'v_mul_f32 v{ACCV+2}, v{S}, v{P}')
for j in range(1, 8):
    e(f'v_fmac_f32 v{ACCV+1}, v{S+j}, v{T+j}')
    e(f'v_fmac_f32 v{ACCV+2}, v{S+j}, v{P+j}')
e(f'v_lshlrev_b32 v{a_}, 9, v{part_}')
e(f'v_lshl_add_u32 v{a_}, v{c_}, 2, v{a_}')
e(f'ds_write_b32 v{a_}, v{ACCV+1} offset:{RED2}')
e(f'v_lshlrev_b32 v{a_}, 2, v{part_}')
e(f'ds_write_b32 v{a_}, v{ACCV+2} offset:{LP}')
e('s_waitcnt lgkmcnt(0)')
e('s_barrier')
e('s_cmp_ge_u32 s14, 2')
e('s_cbranch_scc1 L_APUB_SKIP')
e(f'v_lshlrev_b32 v{a_}, 2, v0')
for j in range(8):
    e(f'ds_read_b32 v{T+j}, v{a_} offset:{RED2+j*512}')
e(f'v_mov_b32 v{VX}, 0')
e(f'ds_read_b128 v[{P}:{P+3}], v{VX} offset:{LP}')
e(f'ds_read_b128 v[{P+4}:{P+7}], v{VX} offset:{LP+16}')
e('s_waitcnt lgkmcnt(0)')
for j in range(1, 8):
    e(f'v_add_f32 v{T}, v{T}, v{T+j}')
    e(f'v_add_f32 v{P}, v{P}, v{P+j}')
e('s_lshl_b32 s93, s2, 9')
e(f'buffer_store_dword v{T}, v{a_}, s[{SWS}:{SWS+3}], s93 offen offset:{PART_O} sc1')
e(f'v_mov_b32 v{VMN+1}, v{P}')
e('s_lshl_b32 s93, s2, 3')
e(f's_add_u32 s93, s93, {PART_ML}')
e('v_cmp_eq_u32 vcc, 0, v0')
e('s_and_saveexec_b64 s[100:101], vcc')
e(f'buffer_store_dwordx2 v[{VMN}:{VMN+1}], v{VX}, s[{SWS}:{SWS+3}], s93 offen sc1')
e('s_mov_b64 exec, -1')
e('s_waitcnt vmcnt(0)')
lab('L_APUB_SKIP')
e('s_barrier')

def signal(off_sgpr_or_imm, tag):
    e('s_cmp_lg_u32 s14, 0')
    e(f's_cbranch_scc1 L_SIG_{tag}')
    e(f'v_mov_b32 v{VX}, {off_sgpr_or_imm}')
    e(f'v_mov_b32 v{VAL}, 1')
    e('v_cmp_eq_u32 vcc, 0, v0')
    e('s_and_saveexec_b64 s[100:101], vcc')
    e(f'buffer_atomic_add v{VAL}, v{VX}, s[{SDBG}:{SDBG+3}], 0 offen')
    e('s_mov_b64 exec, -1')
    lab(f'L_SIG_{tag}')

def poll(off_sgpr_or_imm, target, tag):
    e('s_cmp_lg_u32 s14, 0')
    e(f's_cbranch_scc1 L_POLLD_{tag}')
    e(f'v_mov_b32 v{VX}, {off_sgpr_or_imm}')
    e('s_mov_b32 s92, 0')
    lab(f'L_POLL_{tag}')
    e(f'buffer_load_dword v{VAL}, v{VX}, s[{SDBG}:{SDBG+3}], 0 offen sc1')
    e('s_waitcnt vmcnt(0)')
    e(f'v_readfirstlane_b32 s93, v{VAL}')
    e(f's_cmp_ge_u32 s93, {target}')
    e(f's_cbranch_scc1 L_POLLD_{tag}')
    e(f's_sleep {SLEEP}')
    e('s_add_u32 s92, s92, 1')
    e('s_cmp_lt_u32 s92, 0x40000')
    e(f's_cbranch_scc1 L_POLL_{tag}')
    lab(f'L_POLLD_{tag}')
    e('s_barrier')

e('s_lshr_b32 s99, s17, 1')
e('s_lshl_b32 s99, s99, 2')
signal('s99', 'A')
e('s_lshl_b32 s99, s91, 2')
poll('s99', 16, 'A')
e('s_cmp_ge_u32 s14, 4')
e('s_cbranch_scc1 L_B1_SKIP')
O = S
ML = KR
e(f'v_lshrrev_b32 v{part_}, 7, v0')
e(f'v_and_b32 v{c_}, 127, v0')
e(f'v_lshlrev_b32 v{a_}, 11, v{part_}')
e(f'v_lshl_add_u32 v{a_}, v{c_}, 2, v{a_}')
e(f'v_lshlrev_b32 v{VX}, 5, v{part_}')
for b in range(2):
    e('s_lshl_b32 s93, s91, 12')
    e(f's_add_u32 s93, s93, {PART_O + b*65536}')
    for s in range(4):
        e(f'buffer_load_dword v{O+b*4+s}, v{a_}, s[{SWS}:{SWS+3}], s93 offen offset:{s*512} sc1')
    e('s_lshl_b32 s92, s91, 6')
    e(f's_add_u32 s92, s92, {PART_ML + b*1024}')
    e(f'buffer_load_dwordx4 v[{ML+b*8}:{ML+b*8+3}], v{VX}, s[{SWS}:{SWS+3}], s92 offen sc1')
    e(f'buffer_load_dwordx4 v[{ML+b*8+4}:{ML+b*8+7}], v{VX}, s[{SWS}:{SWS+3}], s92 offen offset:16 sc1')
e('s_waitcnt vmcnt(0)')
e(f'v_lshlrev_b32 v{a_}, 2, v0')
for b in range(2):
    m = [ML+b*8+2*s for s in range(4)]
    l = [ML+b*8+2*s+1 for s in range(4)]
    e(f'v_max3_f32 v{T}, v{m[0]}, v{m[1]}, v{m[2]}')
    e(f'v_max_f32 v{T}, v{T}, v{m[3]}')
    e(f'v_mul_f32 v{T+1}, s98, v{T}')
    for s in range(4):
        e(f'v_fma_f32 v{m[s]}, v{m[s]}, s98, -v{T+1}')
    for s in range(4):
        e(f'v_exp_f32 v{m[s]}, v{m[s]}')
    e('s_nop 0')
    e(f'v_mul_f32 v{T+2}, v{m[0]}, v{l[0]}')
    e(f'v_mul_f32 v{T+3}, v{m[0]}, v{O+b*4}')
    for s in range(1, 4):
        e(f'v_fmac_f32 v{T+2}, v{m[s]}, v{l[s]}')
        e(f'v_fmac_f32 v{T+3}, v{m[s]}, v{O+b*4+s}')
    e(f'v_rcp_f32 v{T+4}, v{T+2}')
    e('s_nop 0')
    e(f'v_mul_f32 v{T+5}, v{T+3}, v{T+4}')
    e(f'v_fma_f32 v{T+6}, -v{T+5}, v{T+2}, v{T+3}')
    e(f'v_fma_f32 v{T+5}, v{T+6}, v{T+4}, v{T+5}')
    bf16_round(T+5, T+6)
    e(f'ds_write_b32 v{a_}, v{T+5} offset:{XO+b*1024}')
e('s_waitcnt lgkmcnt(0)')
lab('L_B1_SKIP')
e('s_barrier')
e(f'v_and_b32 v{a_}, 0x3fc, v0')
e(f'ds_read_b32 v{VAL}, v{a_} offset:{XO}')
e(f'ds_read_b32 v{VAL+1}, v{a_} offset:{XO+1024}')
unpack8(WO, T)
A = S
e('s_waitcnt lgkmcnt(0)')
for b in range(2):
    for j in range(4):
        pk_bc('mul', A+b*8+2*j, T+2*j, VAL+b)
e('s_nop 1')
row_reduce([A+j for j in range(16)], rots=(8, 4))
cross_row_allreduce([A+j for j in range(16)], [KR+j for j in range(16)])
e(f'v_lshlrev_b32 v{a_}, 8, v{WAVE}')
e(f'v_and_b32 v{c_}, 3, v0')
e(f'v_lshl_add_u32 v{a_}, v{c_}, 5, v{a_}')
for b in range(2):
    e(f'ds_write_b128 v{a_}, v[{A+b*8}:{A+b*8+3}] offset:{REDB+b*128}')
    e(f'ds_write_b128 v{a_}, v[{A+b*8+4}:{A+b*8+7}] offset:{REDB+b*128+16}')
e('s_waitcnt lgkmcnt(0)')
e('s_barrier')
e('s_cmp_lg_u32 s14, 0')
e('s_cbranch_scc1 L_B2_SKIP')
e(f'v_lshlrev_b32 v{a_}, 2, v0')
for w in range(16):
    e(f'ds_read_b32 v{KR+w}, v{a_} offset:{REDB+w*256}')
e('s_waitcnt lgkmcnt(0)')
for w in range(1, 16):
    e(f'v_add_f32 v{KR}, v{KR}, v{KR+w}')
e(f'v_lshrrev_b32 v{a_}, 5, v0')
e(f'v_and_b32 v{c_}, 31, v0')
e(f'v_lshlrev_b32 v{a_}, 11, v{a_}')
e(f'v_lshl_add_u32 v{a_}, v{c_}, 2, v{a_}')
e('s_lshl_b32 s93, s91, 12')
e('s_lshl_b32 s92, s90, 7')
e('s_add_u32 s93, s93, s92')
e(f's_add_u32 s93, s93, {ATTN_PART}')
e(f'buffer_store_dword v{KR}, v{a_}, s[{SWS}:{SWS+3}], s93 offen sc1')
e('s_waitcnt vmcnt(0)')
lab('L_B2_SKIP')
signal(CNT_B, 'B')
e('s_cmp_ge_u32 s2, 224')
e('s_cbranch_scc1 L_DONE')
poll(CNT_B, 256, 'B')
e('s_cmp_ge_u32 s14, 4')
e('s_cbranch_scc1 L_C1_SKIP')
AP = KR
e(f'v_lshlrev_b32 v{a_}, 4, v0')
for kk in range(16):
    e(f's_mov_b32 s93, {ATTN_PART + kk*4096}')
    e(f'buffer_load_dwordx4 v[{AP+4*kk}:{AP+4*kk+3}], v{a_}, s[{SWS}:{SWS+3}], s93 offen sc1')
srd(SX, 's64', 's65', 2048)
e(f'v_lshlrev_b32 v{VX}, 3, v0')
e(f'buffer_load_dwordx2 v[{T}:{T+1}], v{VX}, s[{SX}:{SX+3}], 0 offen')
e('s_waitcnt vmcnt(0)')
for kk in range(1, 16):
    for j in range(4):
        e(f'v_add_f32 v{AP+j}, v{AP+j}, v{AP+4*kk+j}')
H = S
e(f'v_lshlrev_b32 v{H}, 16, v{T}')
e(f'v_and_b32 v{H+1}, 0xffff0000, v{T}')
e(f'v_lshlrev_b32 v{H+2}, 16, v{T+1}')
e(f'v_and_b32 v{H+3}, 0xffff0000, v{T+1}')
for j in range(4):
    bf16_round(AP+j, T+2)
    e(f'v_add_f32 v{H+j}, v{H+j}, v{AP+j}')
    bf16_round(H+j, T+2)
e(f'ds_write_b128 v{a_}, v[{H}:{H+3}] offset:{HB}')
mean, var, tq, rcp = T+3, T+4, T+5, T+6
e(f'v_add_f32 v{mean}, v{H}, v{H+1}')
e(f'v_add_f32 v{tq}, v{H+2}, v{H+3}')
e(f'v_add_f32 v{mean}, v{mean}, v{tq}')
wave_allreduce_sum(mean, tq)
e(f'v_lshlrev_b32 v{c_}, 2, v{WAVE}')
e(f'ds_write_b32 v{c_}, v{mean} offset:{WS1}')
e('s_waitcnt lgkmcnt(0)')
lab('L_C1_SKIP')
e('s_barrier')
e('s_cmp_ge_u32 s14, 4')
e('s_cbranch_scc1 L_C2_SKIP')
e(f'v_and_b32 v{part_}, 2, v{WAVE}')
e(f'v_lshlrev_b32 v{part_}, 2, v{part_}')
e(f'ds_read_b64 v[{P}:{P+1}], v{part_} offset:{WS1}')
e('s_waitcnt lgkmcnt(0)')
e(f'v_add_f32 v{mean}, v{P}, v{P+1}')
e(f'v_mul_f32 v{mean}, {INV512:#x}, v{mean}')
for j in range(4):
    e(f'v_sub_f32 v{H+4+j}, v{H+j}, v{mean}')
e(f'v_mul_f32 v{var}, v{H+4}, v{H+4}')
for j in range(1, 4):
    e(f'v_fmac_f32 v{var}, v{H+4+j}, v{H+4+j}')
e('s_nop 1')
wave_allreduce_sum(var, tq)
e(f'ds_write_b32 v{c_}, v{var} offset:{WS2}')
e('s_waitcnt lgkmcnt(0)')
lab('L_C2_SKIP')
e('s_barrier')
e('s_cmp_ge_u32 s14, 4')
e('s_cbranch_scc1 L_C3_SKIP')
e(f'ds_read_b64 v[{P}:{P+1}], v{part_} offset:{WS2}')
e('s_waitcnt lgkmcnt(0)')
e(f'v_add_f32 v{var}, v{P}, v{P+1}')
e(f'v_mul_f32 v{var}, {INV512:#x}, v{var}')
ln_finish(mean, var, tq, rcp)
for j in range(4):
    ln_elem(H+4+j, H+j, mean, var, rcp, tq, P+2, P+3)
e(f'ds_write_b128 v{a_}, v[{H+4}:{H+7}] offset:{HN}')
e('s_waitcnt lgkmcnt(0)')
lab('L_C3_SKIP')
e('s_barrier')
e(f'v_lshrrev_b32 v{a_}, 1, v0')
e(f'v_lshlrev_b32 v{a_}, 2, v{a_}')
e(f'ds_read_b32 v{VAL}, v{a_} offset:{HN}')
e(f'ds_read_b32 v{VAL+1}, v{a_} offset:{HN+2048}')
unpack8(WGU, T)
e('s_waitcnt lgkmcnt(0)')
for b in range(2):
    for j in range(4):
        pk_bc('mul', A+b*8+2*j, T+2*j, VAL+b)
e('s_nop 1')
row_reduce([A+j for j in range(16)], rots=(8, 4, 2))
cross_row_allreduce([A+j for j in range(16)], [KR+j for j in range(16)])
e(f'v_lshlrev_b32 v{a_}, 7, v{WAVE}')
e(f'v_and_b32 v{c_}, 1, v0')
e(f'v_lshl_add_u32 v{a_}, v{c_}, 6, v{a_}')
for j in range(4):
    e(f'ds_write_b128 v{a_}, v[{A+4*j}:{A+4*j+3}] offset:{REDC+16*j}')
e('s_waitcnt lgkmcnt(0)')
e('s_barrier')
e('s_cmp_lg_u32 s14, 0')
e('s_cbranch_scc1 L_C4_SKIP')
e('v_cmp_gt_u32 vcc, 16, v0')
e('s_and_saveexec_b64 s[100:101], vcc')
e(f'v_lshlrev_b32 v{a_}, 2, v0')
for w in range(16):
    e(f'ds_read_b32 v{KR+w}, v{a_} offset:{REDC+w*128}')
    e(f'ds_read_b32 v{KR+16+w}, v{a_} offset:{REDC+w*128+64}')
e('s_waitcnt lgkmcnt(0)')
for w in range(1, 16):
    e(f'v_add_f32 v{KR}, v{KR}, v{KR+w}')
    e(f'v_add_f32 v{KR+16}, v{KR+16}, v{KR+16+w}')
bf16_round(KR, T)
bf16_round(KR+16, T)
e(f'v_mul_f32 v{T+1}, s98, v{KR}')
e(f'v_exp_f32 v{T+1}, -v{T+1}')
e('s_nop 0')
e(f'v_add_f32 v{T+1}, 1.0, v{T+1}')
e(f'v_rcp_f32 v{T+2}, v{T+1}')
e('s_nop 0')
e(f'v_mul_f32 v{T+3}, v{KR}, v{T+2}')
e(f'v_fma_f32 v{T+4}, -v{T+3}, v{T+1}, v{KR}')
e(f'v_fma_f32 v{T+3}, v{T+4}, v{T+2}, v{T+3}')
bf16_round(T+3, T)
e(f'v_mul_f32 v{T+3}, v{T+3}, v{KR+16}')
bf16_round(T+3, T)
e(f'v_lshrrev_b32 v{a_}, 3, v0')
e(f'v_and_b32 v{c_}, 7, v0')
e(f'v_lshlrev_b32 v{a_}, 13, v{a_}')
e(f'v_lshl_add_u32 v{a_}, v{c_}, 2, v{a_}')
e('s_lshl_b32 s93, s2, 5')
e(f's_add_u32 s93, s93, {GU_BUF}')
e(f'buffer_store_dword v{T+3}, v{a_}, s[{SWS}:{SWS+3}], s93 offen sc1')
e('s_mov_b64 exec, -1')
e('s_waitcnt vmcnt(0)')
lab('L_C4_SKIP')
signal(CNT_C, 'C')
e('s_cmp_ge_u32 s2, 64')
e('s_cbranch_scc1 L_DONE')
poll(CNT_C, 224, 'C')
e(f's_add_u32 s88, s86, {GU_BUF}')
e('s_addc_u32 s89, s87, 0')
srd(SG, 's88', 's89', 7168)
e(f's_add_u32 s88, s86, {GU_BUF+8192}')
e('s_addc_u32 s89, s87, 0')
srd(SU, 's88', 's89', 7168)
e(f'v_lshlrev_b32 v{a_}, 2, v0')
e('s_movk_i32 s93, 4096')
G = KR
e(f'buffer_load_dword v{G}, v{a_}, s[{SG}:{SG+3}], 0 offen sc1')
e(f'buffer_load_dword v{G+1}, v{a_}, s[{SG}:{SG+3}], s93 offen sc1')
e(f'buffer_load_dword v{G+2}, v{a_}, s[{SU}:{SU+3}], 0 offen sc1')
e(f'buffer_load_dword v{G+3}, v{a_}, s[{SU}:{SU+3}], s93 offen sc1')
e('s_waitcnt vmcnt(0)')
for i in range(2):
    unpack8(WD+4*i, T)
    for b in range(2):
        for j in range(4):
            pk_bc('mul' if i == 0 else 'fma', A+b*8+2*j, T+2*j, G+b*2+i)
e('s_nop 1')
row_reduce([A+j for j in range(16)])
cross_row_allreduce([A+j for j in range(16)], [KR+16+j for j in range(16)])
e(f'v_lshlrev_b32 v{a_}, 6, v{WAVE}')
for j in range(4):
    e(f'ds_write_b128 v{a_}, v[{A+4*j}:{A+4*j+3}] offset:{REDD+16*j}')
e('s_waitcnt lgkmcnt(0)')
e('s_barrier')
e('s_cmp_lg_u32 s14, 0')
e('s_cbranch_scc1 L_DONE')
e('v_cmp_gt_u32 vcc, 16, v0')
e('s_and_saveexec_b64 s[100:101], vcc')
e(f'v_lshlrev_b32 v{a_}, 2, v0')
for w in range(16):
    e(f'ds_read_b32 v{KR+w}, v{a_} offset:{REDD+w*64}')
e(f'v_lshrrev_b32 v{part_}, 3, v0')
e(f'v_and_b32 v{c_}, 7, v0')
e(f'v_lshlrev_b32 v{part_}, 9, v{part_}')
e(f'v_add_u32 v{part_}, v{part_}, v{c_}')
e('s_lshl_b32 s93, s2, 3')
e(f'v_add_u32 v{part_}, s93, v{part_}')
e(f'v_lshlrev_b32 v{VX}, 2, v{part_}')
e(f'ds_read_b32 v{T}, v{VX} offset:{HB}')
e('s_waitcnt lgkmcnt(0)')
for w in range(1, 16):
    e(f'v_add_f32 v{KR}, v{KR}, v{KR+w}')
bf16_round(KR, T+1)
e(f'v_add_f32 v{KR}, v{KR}, v{T}')
e(f'v_cvt_pk_bf16_f32 v{KR}, v{KR}, v{KR}')
e(f'v_lshlrev_b32 v{VX}, 1, v{part_}')
e(f'buffer_store_short v{KR}, v{VX}, s[{SOUT}:{SOUT+3}], 0 offen')
lab('L_DONE')
e('s_endpgm')

hdr = list(HDR)
hdr.append(f'; @launch grid=(256,1,1) block=(1024,1,1) lds={LDS_TOTAL}')
hdr.append('.amdgcn_target "amdgcn-amd-amdhsa--gfx950"')
txt = '\n'.join(hdr) + '\n' + '\n'.join(out) + '\n'
txt += f'''.section .rodata,"a"
.p2align 6
.amdhsa_kernel {NAME}
  .amdhsa_next_free_vgpr 128
  .amdhsa_next_free_sgpr 102
  .amdhsa_accum_offset 128
  .amdhsa_group_segment_fixed_size 0
  .amdhsa_kernarg_size 96
  .amdhsa_user_sgpr_count 2
  .amdhsa_user_sgpr_kernarg_segment_ptr 1
  .amdhsa_system_sgpr_workgroup_id_x 1
  .amdhsa_float_denorm_mode_32 3
.end_amdhsa_kernel
'''
open(sys.argv[1] if len(sys.argv) > 1 else 'sequential_preLN__mha_block_cached__swiglu_ffn__decode.s', 'w').write(txt)
```

```python
import struct, sys, os

HDR = open('sequential_preLN__mha_block_cached__swiglu_ffn__decode.s.ref').read().split('\n')
HDR = [l for l in HDR if l.startswith(';') and '@launch' not in l and 'Override' not in l and 'grid=ceil' not in l]
SLEEP = int(os.environ.get('SLEEP', '4'))
STAMP = int(os.environ.get('STAMP', '0'))
STAMP_BASE = 0xE0000
MAXPOLL = 0x40000

def f2u(x):
    return struct.unpack('<I', struct.pack('<f', x))[0]

L2E = f2u(1.4426950408889634)
SCALE = f2u(128 ** -0.5)
EPS = f2u(1e-5)
INV512 = f2u(1.0 / 512)

PART_O = 0
PART_ML = 0x40000
ATTN_PART = 0x80000
GU_BUF = 0xC0000
WS_SIZE = 0x100000
CNT_CLEAN = 128; CNT_HB = 0

out = []
def e(s):
    out.append('    ' + s)
def lab(s):
    out.append(s + ':')

def srd(d, base_lo, base_hi, nrec):
    e(f's_mov_b32 s{d}, {base_lo}')
    e(f's_and_b32 s{d+1}, {base_hi}, 0xffff')
    e(f's_mov_b32 s{d+2}, {nrec}')
    e(f's_mov_b32 s{d+3}, 0x00020000')

def bf16_round(v, tmp):
    e(f'v_cvt_pk_bf16_f32 v{tmp}, v{v}, v{v}')
    e(f'v_lshlrev_b32 v{v}, 16, v{tmp}')

def row_reduce(vals, rots=(8, 4, 2, 1), op='add'):
    for rot in rots:
        if len(vals) < 3:
            e('s_nop 1')
        for v in vals:
            e(f'v_{op}_f32_dpp v{v}, v{v}, v{v} row_ror:{rot} row_mask:0xf bank_mask:0xf')
    e('s_nop 1')

def cross_row_allreduce(vals, tmps):
    for ins in ('v_permlane16_swap_b32', 'v_permlane32_swap_b32'):
        for v, t in zip(vals, tmps):
            e(f'v_mov_b32 v{t}, v{v}')
        e('s_nop 1')
        for v, t in zip(vals, tmps):
            e(f'{ins} v{v}, v{t}')
        e('s_nop 1')
        for v, t in zip(vals, tmps):
            e(f'v_add_f32 v{v}, v{v}, v{t}')
        e('s_nop 1')

def unpack8(src, dst):
    for j in range(4):
        e(f'v_lshlrev_b32 v{dst+2*j}, 16, v{src+j}')
        e(f'v_and_b32 v{dst+2*j+1}, 0xffff0000, v{src+j}')

def pk_bc(op, acc, src, sc):
    if sc % 2 == 0:
        pair = f'v[{sc}:{sc+1}]'; sel = 0
    else:
        pair = f'v[{sc-1}:{sc}]'; sel = 1
    if op == 'fma':
        mods = 'op_sel_hi:[1,0,1]' if sel == 0 else 'op_sel:[0,1,0] op_sel_hi:[1,1,1]'
        e(f'v_pk_fma_f32 v[{acc}:{acc+1}], v[{src}:{src+1}], {pair}, v[{acc}:{acc+1}] {mods}')
    else:
        mods = 'op_sel_hi:[1,0]' if sel == 0 else 'op_sel:[0,1] op_sel_hi:[1,1]'
        e(f'v_pk_mul_f32 v[{acc}:{acc+1}], v[{src}:{src+1}], {pair} {mods}')

stamp_n = [0]
def stamp():
    if not STAMP: return
    i = stamp_n[0]; stamp_n[0] += 1
    e('s_cmp_lg_u32 s14, 0')
    e(f's_cbranch_scc1 L_ST_{i}')
    e('s_memrealtime s[4:5]')
    e('s_waitcnt lgkmcnt(0)')
    e('s_lshl_b32 s6, s2, 7')
    e(f's_add_u32 s6, s6, {STAMP_BASE + i*8}')
    e('s_mov_b64 s[8:9], exec')
    e('s_mov_b64 exec, 1')
    e('v_mov_b32 v126, s4')
    e('v_mov_b32 v127, s5')
    e('v_mov_b32 v3, 0')
    e('buffer_store_dwordx2 v[126:127], v3, s[36:39], s6 offen')
    e('s_mov_b64 exec, s[8:9]')
    lab(f'L_ST_{i}')

NAME = 'sequential_preLN__mha_block_cached__swiglu_ffn__decode_kernel'
out.append('.text')
out.append(f'.globl {NAME}')
out.append('.p2align 8')
out.append(f'.type {NAME},@function')
lab(NAME)

XN = 0; QRED = 2048; QB = 10240; MB = 10496; LB = 10752; ACC = 11008; RED2 = 43776; LP = 47872
XO = 47936; REDB = 49984; HN = 54080; HB = 58176; WS1 = 62272; WS2 = 62336; REDC = 62400; REDD = 64448
LDS_TOTAL = 65472

LANE = 1; WAVE = 2; VX = 3
Q = 4; ACCV = 8; S = 16; P = 24; T = 32
VM = 40; VL = 41; VMN = 42; VAL = 44; VOFF = 46; VOFF2 = 47
WO = 48; WGU = 52; WD = 56
KR = 64; VR = 96
SK = 20; SV = 24; SX = 28; SWQ = 32; SWS = 36; SDBG = 40; SWO = 44; SG = 48; SU = 52; SD = 56; SOUT = 60
e('s_cmp_ge_u32 s2, 256')
e('s_cbranch_scc1 L_DONE')
e('s_load_dwordx16 s[64:79], s[0:1], 0')
e('s_load_dwordx8 s[80:87], s[0:1], 64')
e(f'v_and_b32 v{LANE}, 63, v0')
e(f'v_lshrrev_b32 v{WAVE}, 6, v0')
e('s_nop 0')
e(f'v_readfirstlane_b32 s14, v{WAVE}')
e('s_lshr_b32 s15, s2, 2')
e('s_lshr_b32 s16, s15, 5')
e('s_and_b32 s17, s15, 31')
e('s_and_b32 s10, s2, 7')
e('s_lshr_b32 s11, s2, 3')
e('s_and_b32 s90, s11, 1')
e('s_lshl_b32 s91, s10, 1')
e('s_add_u32 s90, s90, s91')
e('s_lshr_b32 s91, s11, 1')
e('s_mul_i32 s12, s10, 28')
e('s_add_u32 s12, s12, s11')
e('s_lshl_b32 s13, s10, 3')
e('s_add_u32 s13, s13, s11')
e('s_waitcnt lgkmcnt(0)')
e('s_lshl_b32 s18, s2, 20')
e('s_lshr_b32 s19, s2, 12')
e('s_add_u32 s88, s66, s18')
e('s_addc_u32 s89, s67, s19')
srd(SK, 's88', 's89', 0x100000)
e('s_add_u32 s88, s68, s18')
e('s_addc_u32 s89, s69, s19')
srd(SV, 's88', 's89', 0x100000)
e('s_lshl_b32 s18, s16, 10')
e('s_add_u32 s88, s64, s18')
e('s_addc_u32 s89, s65, 0')
srd(SX, 's88', 's89', 1024)
e('s_lshl_b32 s18, s17, 8')
e('s_add_u32 s88, s70, s18')
e('s_addc_u32 s89, s71, 0')
e('s_sub_u32 s19, 0x400000, s18')
srd(SWQ, 's88', 's89', 's19')
srd(SWS, 's86', 's87', WS_SIZE)
srd(SDBG, 's84', 's85', 256)
e('s_lshl_b32 s18, s91, 18')
e('s_lshl_b32 s19, s90, 6')
e('s_add_u32 s18, s18, s19')
e('s_add_u32 s88, s72, s18')
e('s_addc_u32 s89, s73, 0')
e('s_sub_u32 s19, 0x400000, s18')
srd(SWO, 's88', 's89', 's19')
e('s_lshl_b32 s18, s12, 4')
e(f's_sub_u32 s19, {512*3584}, s18')
e('s_cmp_lt_u32 s11, 28')
e('s_cselect_b32 s19, s19, 0')
e('s_cselect_b32 s18, s18, 0')
e('s_add_u32 s88, s76, s18')
e('s_addc_u32 s89, s77, 0')
srd(SG, 's88', 's89', 's19')
e('s_add_u32 s88, s78, s18')
e('s_addc_u32 s89, s79, 0')
srd(SU, 's88', 's89', 's19')
e('s_lshl_b32 s18, s13, 4')
e(f's_sub_u32 s19, {1792*1024}, s18')
e('s_cmp_lt_u32 s11, 8')
e('s_cselect_b32 s19, s19, 0')
e('s_cselect_b32 s18, s18, 0')
e('s_add_u32 s88, s80, s18')
e('s_addc_u32 s89, s81, 0')
srd(SD, 's88', 's89', 's19')
srd(SOUT, 's82', 's83', 2048)
stamp()

e('s_cmp_ge_u32 s14, 2')
e('s_cbranch_scc1 L_CLEAN_SKIP')
e(f'v_mov_b32 v{T}, -1')
e(f'v_mov_b32 v{T+1}, -1')
e(f'v_lshlrev_b32 v{VX}, 2, v0')
e('s_lshl_b32 s93, s2, 9')
e(f'buffer_store_dword v{T}, v{VX}, s[{SWS}:{SWS+3}], s93 offen offset:{PART_O} sc1')
e('s_cmp_lg_u32 s14, 0')
e('s_cbranch_scc1 L_CLEAN_SKIP')
e(f'v_lshrrev_b32 v{VX}, 5, v0')
e(f'v_and_b32 v{T+2}, 31, v0')
e(f'v_lshlrev_b32 v{VX}, 11, v{VX}')
e(f'v_lshl_add_u32 v{VX}, v{T+2}, 2, v{VX}')
e('s_lshl_b32 s93, s91, 12')
e('s_lshl_b32 s92, s90, 7')
e('s_add_u32 s93, s93, s92')
e(f's_add_u32 s93, s93, {ATTN_PART}')
e(f'buffer_store_dword v{T}, v{VX}, s[{SWS}:{SWS+3}], s93 offen sc1')
e('s_mov_b64 exec, 0xffff')
e(f'v_lshrrev_b32 v{VX}, 3, v0')
e(f'v_and_b32 v{T+2}, 7, v0')
e(f'v_lshlrev_b32 v{VX}, 13, v{VX}')
e(f'v_lshl_add_u32 v{VX}, v{T+2}, 2, v{VX}')
e('s_lshl_b32 s93, s12, 5')
e(f's_add_u32 s93, s93, {GU_BUF}')
e('s_cmp_ge_u32 s11, 28')
e('s_cbranch_scc1 L_CLEAN_NOGU')
e(f'buffer_store_dword v{T}, v{VX}, s[{SWS}:{SWS+3}], s93 offen sc1')
lab('L_CLEAN_NOGU')
e('s_mov_b64 exec, 1')
e(f'v_mov_b32 v{VX}, 0')
e('s_lshl_b32 s93, s2, 3')
e(f's_add_u32 s93, s93, {PART_ML}')
e(f'buffer_store_dwordx2 v[{T}:{T+1}], v{VX}, s[{SWS}:{SWS+3}], s93 offen sc1')
e('s_mov_b64 exec, -1')
e('s_nop 1')
lab('L_CLEAN_SKIP')

e(f'v_lshlrev_b32 v{VX}, 4, v{LANE}')
e(f'buffer_load_dwordx4 v[{T}:{T+3}], v{VX}, s[{SX}:{SX+3}], 0 offen')
e(f'v_lshrrev_b32 v{VX}, 4, v0')
e(f'v_lshlrev_b32 v{VX}, 13, v{VX}')
e(f'v_and_b32 v{VM}, 15, v0')
e(f'v_lshl_add_u32 v{VX}, v{VM}, 4, v{VX}')
for i in range(8):
    e(f's_mov_b32 s93, {i*524288}')
    e(f'buffer_load_dwordx4 v[{VR+4*i}:{VR+4*i+3}], v{VX}, s[{SWQ}:{SWQ+3}], s93 offen')
e(f'v_lshlrev_b32 v{VOFF}, 13, v{WAVE}')
e(f'v_lshl_add_u32 v{VOFF}, v{LANE}, 4, v{VOFF}')
e(f'v_add_u32 v{VOFF2}, 4096, v{VOFF}')
e('s_mov_b32 s94, 0')
def kv_loads(R, srdb, soff):
    for i in range(8):
        vo = VOFF if i < 4 else VOFF2
        e(f'buffer_load_dwordx4 v[{R+4*i}:{R+4*i+3}], v{vo}, s[{srdb}:{srdb+3}], {soff} offen offset:{(i%4)*1024} nt')
kv_loads(KR, SK, 's94')

e('s_waitcnt vmcnt(16)')
X = S; D = P
t0, t1, t2, t3, t4, t5 = 40, 41, 42, 43, 44, 45
unpack8(T, X)
e(f'v_add_f32 v{t0}, v{X}, v{X+1}')
for j in range(2, 8):
    e(f'v_add_f32 v{t0}, v{t0}, v{X+j}')
def wave_allreduce_sum(v, t):
    row_reduce([v])
    cross_row_allreduce([v], [t])
def ln_finish(mean, var, tmp, rcp):
    bf16_round(var, tmp)
    bf16_round(mean, tmp)
    e(f'v_add_f32 v{var}, {EPS:#x}, v{var}')
    bf16_round(var, tmp)
    e(f'v_sqrt_f32 v{var}, v{var}')
    e('s_nop 0')
    bf16_round(var, tmp)
    e(f'v_rcp_f32 v{rcp}, v{var}')
    e('s_nop 0')
def ln_elem(dst, src, mean, den, rcp, ta, tb, tc):
    e(f'v_sub_f32 v{dst}, v{src}, v{mean}')
    bf16_round(dst, ta)
    e(f'v_mul_f32 v{tb}, v{dst}, v{rcp}')
    e(f'v_fma_f32 v{tc}, -v{tb}, v{den}, v{dst}')
    e(f'v_fma_f32 v{dst}, v{tc}, v{rcp}, v{tb}')
    bf16_round(dst, ta)
wave_allreduce_sum(t0, t1)
e(f'v_mul_f32 v{t0}, {INV512:#x}, v{t0}')
for j in range(8):
    e(f'v_sub_f32 v{D+j}, v{X+j}, v{t0}')
e(f'v_mul_f32 v{t2}, v{D}, v{D}')
for j in range(1, 8):
    e(f'v_fmac_f32 v{t2}, v{D+j}, v{D+j}')
e('s_nop 1')
wave_allreduce_sum(t2, t1)
e(f'v_mul_f32 v{t2}, {INV512:#x}, v{t2}')
ln_finish(t0, t2, t1, t3)
for j in range(8):
    ln_elem(D+j, X+j, t0, t2, t3, t1, t4, t5)
e(f'v_lshlrev_b32 v{VX}, 5, v{LANE}')
e(f'ds_write_b128 v{VX}, v[{D}:{D+3}] offset:{XN}')
e(f'ds_write_b128 v{VX}, v[{D+4}:{D+7}] offset:{XN+16}')
e('s_waitcnt lgkmcnt(0)')
e('s_barrier')
e('s_cmp_lg_u32 s14, 0')
e('s_cbranch_scc1 L_CS_SKIP')
e('s_mov_b64 exec, 1')
e(f'v_mov_b32 v{VX}, {CNT_CLEAN}')
e(f'v_mov_b32 v{t0}, 1')
e(f'buffer_atomic_add v{t0}, v{VX}, s[{SDBG}:{SDBG+3}], 0 offen')
e('s_mov_b64 exec, -1')
lab('L_CS_SKIP')
e(f'v_lshrrev_b32 v{VX}, 4, v0')
e(f'v_lshlrev_b32 v{VX}, 2, v{VX}')
for i in range(8):
    e(f'ds_read_b32 v{S+i}, v{VX} offset:{XN+i*256}')
e('s_waitcnt vmcnt(8) lgkmcnt(0)')
for i in range(8):
    unpack8(VR+4*i, T)
    for j in range(4):
        pk_bc('mul' if i == 0 else 'fma', ACCV+2*j, T+2*j, S+i)
kv_loads(VR, SV, 's94')
e('s_nop 1')
cross_row_allreduce([ACCV+j for j in range(8)], [T+j for j in range(8)])
e(f'v_lshlrev_b32 v{VX}, 9, v{WAVE}')
e(f'v_and_b32 v{t0}, 15, v0')
e(f'v_lshl_add_u32 v{VX}, v{t0}, 5, v{VX}')
e(f'ds_write_b128 v{VX}, v[{ACCV}:{ACCV+3}] offset:{QRED}')
e(f'ds_write_b128 v{VX}, v[{ACCV+4}:{ACCV+7}] offset:{QRED+16}')
e('s_waitcnt lgkmcnt(0)')
e('s_barrier')
e('s_cmp_ge_u32 s14, 2')
e('s_cbranch_scc1 L_QSKIP')
e(f'v_lshlrev_b32 v{VX}, 2, v0')
for w in range(16):
    e(f'ds_read_b32 v{S+w}, v{VX} offset:{QRED+w*512}')
e('s_waitcnt lgkmcnt(0)')
for w in range(1, 16):
    e(f'v_add_f32 v{S}, v{S}, v{S+w}')
e(f'v_cvt_pk_bf16_f32 v{S}, v{S}, v{S}')
e(f'v_lshlrev_b32 v{VX}, 1, v0')
e(f'ds_write_b16 v{VX}, v{S} offset:{QB}')
e('s_waitcnt lgkmcnt(0)')
lab('L_QSKIP')
e('s_barrier')
e(f'v_and_b32 v{VX}, 15, v0')
e(f'v_lshlrev_b32 v{VX}, 4, v{VX}')
e(f'ds_read_b128 v[{Q}:{Q+3}], v{VX} offset:{QB}')
e(f'v_mov_b32 v{VM}, 0xff800000')
e(f'v_mov_b32 v{VL}, 0')
for j in range(8):
    e(f'v_mov_b32 v{ACCV+j}, 0')
e(f's_mov_b32 s96, {SCALE:#x}')
e(f's_mov_b32 s97, {SCALE:#x}')
e(f's_mov_b32 s98, {L2E:#x}')
e('s_waitcnt lgkmcnt(0)')
lab('L_LOOP')
e('s_add_u32 s95, s94, 0x20000')
e('s_waitcnt vmcnt(8)')
for j in range(4):
    for i in range(8):
        src2 = '0' if j == 0 else f'v{S+i}'
        e(f'v_dot2_f32_bf16 v{S+i}, v{KR+4*i+j}, v{Q+j}, {src2}')
kv_loads(KR, SK, 's95')
row_reduce([S+i for i in range(8)])
for i in range(0, 8, 2):
    e(f'v_cvt_pk_bf16_f32 v{T+i}, v{S+i}, v{S+i+1}')
for i in range(0, 8, 2):
    e(f'v_lshlrev_b32 v{S+i}, 16, v{T+i}')
    e(f'v_and_b32 v{S+i+1}, 0xffff0000, v{T+i}')
for i in range(0, 8, 2):
    e(f'v_pk_mul_f32 v[{S+i}:{S+i+1}], v[{S+i}:{S+i+1}], s[96:97]')
for i in range(0, 8, 2):
    e(f'v_cvt_pk_bf16_f32 v{T+i}, v{S+i}, v{S+i+1}')
for i in range(0, 8, 2):
    e(f'v_lshlrev_b32 v{S+i}, 16, v{T+i}')
    e(f'v_and_b32 v{S+i+1}, 0xffff0000, v{T+i}')
e(f'v_max3_f32 v{VMN}, v{S}, v{S+1}, v{VM}')
e(f'v_max3_f32 v{T}, v{S+2}, v{S+3}, v{S+4}')
e(f'v_max3_f32 v{T+1}, v{S+5}, v{S+6}, v{S+7}')
e(f'v_max3_f32 v{VMN}, v{VMN}, v{T}, v{T+1}')
e(f'v_mul_f32 v{T+2}, s98, v{VMN}')
e(f'v_fma_f32 v{VAL}, v{VM}, s98, -v{T+2}')
e(f'v_exp_f32 v{VAL}, v{VAL}')
for i in range(8):
    e(f'v_fma_f32 v{P+i}, v{S+i}, s98, -v{T+2}')
for i in range(8):
    e(f'v_exp_f32 v{P+i}, v{P+i}')
e(f'v_mov_b32 v{VAL+1}, v{VAL}')
e(f'v_mov_b32 v{VM}, v{VMN}')
e(f'v_mul_f32 v{VL}, v{VL}, v{VAL}')
for j in range(4):
    e(f'v_pk_mul_f32 v[{ACCV+2*j}:{ACCV+2*j+1}], v[{ACCV+2*j}:{ACCV+2*j+1}], v[{VAL}:{VAL+1}]')
for i in range(8):
    e(f'v_add_f32 v{VL}, v{VL}, v{P+i}')
e('s_waitcnt vmcnt(8)')
for i in range(8):
    unpack8(VR+4*i, T)
    for j in range(4):
        pk_bc('fma', ACCV+2*j, T+2*j, P+i)
kv_loads(VR, SV, 's95')
e('s_mov_b32 s94, s95')
e('s_cmp_lt_u32 s94, 0x100000')
e('s_cbranch_scc1 L_LOOP')

WOr = 64; WGUr = 80; WDr = 96
c_, part_, a_ = 40, 41, 44
TID4 = 45
e('s_cmp_ge_u32 s14, 4')
e('s_cbranch_scc1 L_WLOAD_SKIP')
e(f'v_lshrrev_b32 v{VX}, 2, v0')
e(f'v_lshlrev_b32 v{VX}, 10, v{VX}')
e(f'v_and_b32 v{T}, 3, v0')
e(f'v_lshl_add_u32 v{VX}, v{T}, 4, v{VX}')
for i in range(4):
    e(f's_mov_b32 s93, {i*65536}')
    e(f'buffer_load_dwordx4 v[{WOr+4*i}:{WOr+4*i+3}], v{VX}, s[{SWO}:{SWO+3}], s93 offen')
e(f'v_lshrrev_b32 v{VX}, 1, v0')
e('s_movk_i32 s93, 3584')
e(f'v_mul_lo_u32 v{VX}, v{VX}, s93')
e('s_mov_b32 s92, 0x55555555')
e('s_mov_b32 s93, 0x55555555')
e('s_mov_b64 exec, s[92:93]')
for i in range(4):
    e(f's_mov_b32 s99, {i*128*3584}')
    e(f'buffer_load_dwordx4 v[{WGUr+4*i}:{WGUr+4*i+3}], v{VX}, s[{SG}:{SG+3}], s99 offen')
e('s_not_b64 exec, exec')
for i in range(4):
    e(f's_mov_b32 s99, {i*128*3584}')
    e(f'buffer_load_dwordx4 v[{WGUr+4*i}:{WGUr+4*i+3}], v{VX}, s[{SU}:{SU+3}], s99 offen')
e('s_mov_b64 exec, -1')
e(f'v_lshlrev_b32 v{VX}, 10, v0')
for i in range(7):
    e(f's_mov_b32 s93, {i*262144}')
    e(f'buffer_load_dwordx4 v[{WDr+4*i}:{WDr+4*i+3}], v{VX}, s[{SD}:{SD+3}], s93 offen')
lab('L_WLOAD_SKIP')
stamp()
e(f'v_lshrrev_b32 v{VX}, 4, v0')
e(f'v_lshlrev_b32 v{VAL}, 9, v{VX}')
e(f'v_and_b32 v{VAL+1}, 15, v0')
e(f'v_lshl_add_u32 v{VAL}, v{VAL+1}, 5, v{VAL}')
e(f'ds_write_b128 v{VAL}, v[{ACCV}:{ACCV+3}] offset:{ACC}')
e(f'ds_write_b128 v{VAL}, v[{ACCV+4}:{ACCV+7}] offset:{ACC+16}')
e(f'v_lshlrev_b32 v{VX}, 2, v{VX}')
e(f'ds_write_b32 v{VX}, v{VM} offset:{MB}')
e(f'ds_write_b32 v{VX}, v{VL} offset:{LB}')
e('s_waitcnt lgkmcnt(0)')
e('s_barrier')
e(f'v_lshlrev_b32 v{VX}, 4, v{VAL+1}')
e(f'ds_read_b128 v[{ACCV}:{ACCV+3}], v{VX} offset:{MB}')
e(f'v_and_b32 v{c_}, 127, v0')
e(f'v_lshrrev_b32 v{part_}, 7, v0')
e(f'v_lshlrev_b32 v{a_}, 5, v{part_}')
e(f'ds_read_b128 v[{S}:{S+3}], v{a_} offset:{MB}')
e(f'ds_read_b128 v[{S+4}:{S+7}], v{a_} offset:{MB+16}')
e(f'ds_read_b128 v[{P}:{P+3}], v{a_} offset:{LB}')
e(f'ds_read_b128 v[{P+4}:{P+7}], v{a_} offset:{LB+16}')
e(f'v_lshlrev_b32 v{a_}, 12, v{part_}')
e(f'v_lshl_add_u32 v{a_}, v{c_}, 2, v{a_}')
for j in range(8):
    e(f'ds_read_b32 v{T+j}, v{a_} offset:{ACC+j*512}')
e('s_waitcnt lgkmcnt(0)')
e(f'v_max3_f32 v{VMN}, v{ACCV}, v{ACCV+1}, v{ACCV+2}')
e(f'v_max_f32 v{VMN}, v{VMN}, v{ACCV+3}')
row_reduce([VMN], op='max')
e(f'v_mul_f32 v{ACCV}, s98, v{VMN}')
for j in range(8):
    e(f'v_fma_f32 v{S+j}, v{S+j}, s98, -v{ACCV}')
for j in range(8):
    e(f'v_exp_f32 v{S+j}, v{S+j}')
e('s_nop 0')
e(f'v_mul_f32 v{ACCV+1}, v{S}, v{T}')
e(f'v_mul_f32 v{ACCV+2}, v{S}, v{P}')
for j in range(1, 8):
    e(f'v_fmac_f32 v{ACCV+1}, v{S+j}, v{T+j}')
    e(f'v_fmac_f32 v{ACCV+2}, v{S+j}, v{P+j}')
e(f'v_lshlrev_b32 v{a_}, 9, v{part_}')
e(f'v_lshl_add_u32 v{a_}, v{c_}, 2, v{a_}')
e(f'ds_write_b32 v{a_}, v{ACCV+1} offset:{RED2}')
e(f'v_lshlrev_b32 v{a_}, 2, v{part_}')
e(f'ds_write_b32 v{a_}, v{ACCV+2} offset:{LP}')
e('s_waitcnt lgkmcnt(0)')
e('s_barrier')
e('s_cmp_ge_u32 s14, 8')
e('s_cbranch_scc1 L_DONE')
e(f'v_and_b32 v{TID4}, 255, v0')
e('s_cmp_ge_u32 s14, 2')
e('s_cbranch_scc1 L_APUB_SKIP')
e(f'v_lshlrev_b32 v{a_}, 2, v0')
for j in range(8):
    e(f'ds_read_b32 v{T+j}, v{a_} offset:{RED2+j*512}')
e(f'v_mov_b32 v{VX}, 0')
e(f'ds_read_b128 v[{P}:{P+3}], v{VX} offset:{LP}')
e(f'ds_read_b128 v[{P+4}:{P+7}], v{VX} offset:{LP+16}')
e('s_waitcnt lgkmcnt(0)')
for j in range(1, 8):
    e(f'v_add_f32 v{T}, v{T}, v{T+j}')
    e(f'v_add_f32 v{P}, v{P}, v{P+j}')
e('s_lshl_b32 s93, s2, 9')
e(f'buffer_store_dword v{T}, v{a_}, s[{SWS}:{SWS+3}], s93 offen offset:{PART_O} sc1')
e(f'v_mov_b32 v{VMN+1}, v{P}')
e('s_cmp_lg_u32 s14, 0')
e('s_cbranch_scc1 L_APUB_SKIP')
e('s_lshl_b32 s93, s2, 3')
e(f's_add_u32 s93, s93, {PART_ML}')
e('s_mov_b64 exec, 1')
e(f'buffer_store_dwordx2 v[{VMN}:{VMN+1}], v{VX}, s[{SWS}:{SWS+3}], s93 offen sc1')
e('s_mov_b64 exec, -1')
stamp()
lab('L_APUB_SKIP')
e('s_cmp_lg_u32 s14, 4')
e('s_cbranch_scc1 L_P1_SKIP')
e(f'v_mov_b32 v{VX}, {CNT_CLEAN}')
e('s_mov_b32 s92, 0')
lab('L_PCLEAN')
e(f'buffer_load_dword v{VAL}, v{VX}, s[{SDBG}:{SDBG+3}], 0 offen sc1')
e('s_waitcnt vmcnt(0)')
e(f'v_readfirstlane_b32 s93, v{VAL}')
e('s_cmp_ge_u32 s93, 256')
e('s_cbranch_scc1 L_PCLEAN_D')
e(f's_sleep {SLEEP}')
e('s_add_u32 s92, s92, 1')
e(f's_cmp_lt_u32 s92, {MAXPOLL}')
e('s_cbranch_scc1 L_PCLEAN')
lab('L_PCLEAN_D')
e('s_mov_b64 exec, 0xffff')
e(f'v_lshrrev_b32 v{VX}, 3, v{LANE}')
e(f'v_and_b32 v{c_}, 7, v{LANE}')
e(f'v_lshlrev_b32 v{VX}, 10, v{VX}')
e(f'v_lshl_add_u32 v{VX}, v{c_}, 3, v{VX}')
e('s_lshl_b32 s93, s91, 6')
e(f's_add_u32 s93, s93, {PART_ML}')
e('s_mov_b32 s92, 0')
lab('L_PML')
e(f'buffer_load_dwordx2 v[{VAL}:{VAL+1}], v{VX}, s[{SWS}:{SWS+3}], s93 offen sc1')
e('s_waitcnt vmcnt(0)')
e(f'v_cmp_u_f32 vcc, v{VAL}, v{VAL+1}')
e('s_cbranch_vccz L_PML_D')
e(f's_sleep {SLEEP}')
e('s_add_u32 s92, s92, 1')
e(f's_cmp_lt_u32 s92, {MAXPOLL}')
e('s_cbranch_scc1 L_PML')
lab('L_PML_D')
e('s_mov_b64 exec, -1')
e(f'v_and_b32 v{TID4}, 255, v0')
lab('L_P1_SKIP')
e('s_barrier')
stamp()
e('s_cmp_lt_u32 s14, 4')
e('s_cbranch_scc1 L_B1_SKIP')
O = S
ML = KR
e(f'v_lshrrev_b32 v{part_}, 7, v{TID4}')
e(f'v_and_b32 v{c_}, 127, v{TID4}')
e(f'v_lshlrev_b32 v{a_}, 11, v{part_}')
e(f'v_lshl_add_u32 v{a_}, v{c_}, 2, v{a_}')
e(f'v_lshlrev_b32 v{VX}, 5, v{part_}')
e('s_mov_b32 s99, 0')
lab('L_B1_RETRY')
for b in range(2):
    e('s_lshl_b32 s93, s91, 12')
    e(f's_add_u32 s93, s93, {PART_O + b*65536}')
    for s_ in range(4):
        e(f'buffer_load_dword v{O+b*4+s_}, v{a_}, s[{SWS}:{SWS+3}], s93 offen offset:{s_*512} sc1')
    e('s_lshl_b32 s92, s91, 6')
    e(f's_add_u32 s92, s92, {PART_ML + b*1024}')
    e(f'buffer_load_dwordx4 v[{ML+b*8}:{ML+b*8+3}], v{VX}, s[{SWS}:{SWS+3}], s92 offen sc1')
    e(f'buffer_load_dwordx4 v[{ML+b*8+4}:{ML+b*8+7}], v{VX}, s[{SWS}:{SWS+3}], s92 offen offset:16 sc1')
e('s_waitcnt vmcnt(0)')
XR = [VOFF, VOFF2]
for b in range(2):
    m = [ML+b*8+2*s_ for s_ in range(4)]
    l = [ML+b*8+2*s_+1 for s_ in range(4)]
    e(f'v_max3_f32 v{T}, v{m[0]}, v{m[1]}, v{m[2]}')
    e(f'v_max_f32 v{T}, v{T}, v{m[3]}')
    e(f'v_mul_f32 v{T+1}, s98, v{T}')
    for s_ in range(4):
        e(f'v_fma_f32 v{m[s_]}, v{m[s_]}, s98, -v{T+1}')
    for s_ in range(4):
        e(f'v_exp_f32 v{m[s_]}, v{m[s_]}')
    e('s_nop 0')
    e(f'v_mul_f32 v{T+2}, v{m[0]}, v{l[0]}')
    e(f'v_mul_f32 v{T+3}, v{m[0]}, v{O+b*4}')
    for s_ in range(1, 4):
        e(f'v_fmac_f32 v{T+2}, v{m[s_]}, v{l[s_]}')
        e(f'v_fmac_f32 v{T+3}, v{m[s_]}, v{O+b*4+s_}')
    e(f'v_rcp_f32 v{T+4}, v{T+2}')
    e('s_nop 0')
    e(f'v_mul_f32 v{T+5}, v{T+3}, v{T+4}')
    e(f'v_fma_f32 v{T+6}, -v{T+5}, v{T+2}, v{T+3}')
    e(f'v_fma_f32 v{XR[b]}, v{T+6}, v{T+4}, v{T+5}')
e(f'v_cmp_u_f32 vcc, v{XR[0]}, v{XR[1]}')
e('s_cbranch_vccz L_B1_OK')
e('s_add_u32 s99, s99, 1')
e(f's_cmp_lt_u32 s99, {MAXPOLL}')
e('s_cbranch_scc1 L_B1_RETRY')
lab('L_B1_OK')
e(f'v_lshlrev_b32 v{a_}, 2, v{TID4}')
for b in range(2):
    bf16_round(XR[b], T+6)
    e(f'ds_write_b32 v{a_}, v{XR[b]} offset:{XO+b*1024}')
e('s_waitcnt lgkmcnt(0)')
lab('L_B1_SKIP')
e('s_barrier')

def reduce_scatter16(A, rots):
    e('s_nop 1')
    for i in range(8):
        e(f'v_permlane32_swap_b32 v{A+i}, v{A+i+8}')
    e('s_nop 1')
    for i in range(8):
        e(f'v_add_f32 v{A+i}, v{A+i}, v{A+i+8}')
    e('s_nop 1')
    for i in range(4):
        e(f'v_permlane16_swap_b32 v{A+i}, v{A+i+4}')
    e('s_nop 1')
    for i in range(4):
        e(f'v_add_f32 v{A+i}, v{A+i}, v{A+i+4}')
    e('s_nop 1')
    for rot in rots:
        for i in range(4):
            e(f'v_add_f32_dpp v{A+i}, v{A+i}, v{A+i} row_ror:{rot} row_mask:0xf bank_mask:0xf')
    e('s_nop 1')

A = S
XS = 48
e('s_cmp_ge_u32 s14, 4')
e('s_cbranch_scc1 L_B2_SKIP')
e(f'v_and_b32 v{a_}, 0xfc, v0')
for b in range(2):
    for i in range(4):
        e(f'ds_read_b32 v{XS+b*4+i}, v{a_} offset:{XO+b*1024+i*256}')
e('s_waitcnt vmcnt(0) lgkmcnt(0)')
for i in range(4):
    unpack8(WOr+4*i, T)
    for b in range(2):
        for j in range(4):
            pk_bc('mul' if i == 0 else 'fma', A+b*8+2*j, T+2*j, XS+b*4+i)
reduce_scatter16(A, (8, 4))
e(f'v_lshlrev_b32 v{a_}, 8, v{WAVE}')
e(f'v_and_b32 v{c_}, 3, v0')
e(f'v_lshl_add_u32 v{a_}, v{c_}, 5, v{a_}')
e(f'v_and_b32 v{c_}, 32, v0')
e(f'v_lshl_add_u32 v{a_}, v{c_}, 2, v{a_}')
e(f'v_and_b32 v{c_}, 16, v0')
e(f'v_add_u32 v{a_}, v{a_}, v{c_}')
e(f'ds_write_b128 v{a_}, v[{A}:{A+3}] offset:{REDB}')
e('s_waitcnt lgkmcnt(0)')
lab('L_B2_SKIP')
e('s_barrier')
e('s_cmp_lg_u32 s14, 0')
e('s_cbranch_scc1 L_B3_SKIP')
e(f'v_lshlrev_b32 v{a_}, 2, v0')
for w in range(4):
    e(f'ds_read_b32 v{T+w}, v{a_} offset:{REDB+w*256}')
e('s_waitcnt lgkmcnt(0)')
e(f'v_add_f32 v{T}, v{T}, v{T+1}')
e(f'v_add_f32 v{T+2}, v{T+2}, v{T+3}')
e(f'v_add_f32 v{T}, v{T}, v{T+2}')
e(f'v_lshrrev_b32 v{a_}, 5, v0')
e(f'v_and_b32 v{c_}, 31, v0')
e(f'v_lshlrev_b32 v{a_}, 11, v{a_}')
e(f'v_lshl_add_u32 v{a_}, v{c_}, 2, v{a_}')
e('s_lshl_b32 s93, s91, 12')
e('s_lshl_b32 s92, s90, 7')
e('s_add_u32 s93, s93, s92')
e(f's_add_u32 s93, s93, {ATTN_PART}')
e(f'buffer_store_dword v{T}, v{a_}, s[{SWS}:{SWS+3}], s93 offen sc1')
stamp()
lab('L_B3_SKIP')
e('s_cmp_ge_u32 s11, 28')
e('s_cbranch_scc1 L_DONE')
e('s_cmp_lg_u32 s14, 4')
e('s_cbranch_scc1 L_P2_SKIP')
e(f'v_lshlrev_b32 v{VX}, 5, v{LANE}')
e(f's_mov_b32 s93, {PART_ML}')
e('s_mov_b32 s92, 0')
lab('L_PMLA')
e(f'buffer_load_dwordx4 v[{KR}:{KR+3}], v{VX}, s[{SWS}:{SWS+3}], s93 offen sc1')
e(f'buffer_load_dwordx4 v[{KR+4}:{KR+7}], v{VX}, s[{SWS}:{SWS+3}], s93 offen offset:16 sc1')
e('s_waitcnt vmcnt(0)')
for j in range(1, 7):
    e(f'v_add_f32 v{KR}, v{KR}, v{KR+j}')
e(f'v_cmp_u_f32 vcc, v{KR}, v{KR+7}')
e('s_cbranch_vccz L_PMLA_D')
e(f's_sleep {SLEEP}')
e('s_add_u32 s92, s92, 1')
e(f's_cmp_lt_u32 s92, {MAXPOLL}')
e('s_cbranch_scc1 L_PMLA')
lab('L_PMLA_D')
lab('L_P2_SKIP')
e('s_barrier')
stamp()
e('s_cmp_lt_u32 s14, 4')
e('s_cbranch_scc1 L_C1_SKIP')
AP = KR
srd(SX, 's64', 's65', 2048)
e(f'v_lshlrev_b32 v{a_}, 4, v{TID4}')
e(f'v_lshlrev_b32 v{VX}, 3, v{TID4}')
e(f'buffer_load_dwordx2 v[{T}:{T+1}], v{VX}, s[{SX}:{SX+3}], 0 offen')
e('s_mov_b32 s99, 0')
lab('L_C1_RETRY')
for kk in range(16):
    e(f's_mov_b32 s93, {ATTN_PART + kk*4096}')
    e(f'buffer_load_dwordx4 v[{AP+4*kk}:{AP+4*kk+3}], v{a_}, s[{SWS}:{SWS+3}], s93 offen sc1')
e('s_waitcnt vmcnt(0)')
for kk in range(1, 16):
    for j in range(4):
        e(f'v_add_f32 v{AP+j}, v{AP+j}, v{AP+4*kk+j}')
e(f'v_add_f32 v{T+2}, v{AP}, v{AP+1}')
e(f'v_add_f32 v{T+3}, v{AP+2}, v{AP+3}')
e(f'v_cmp_u_f32 vcc, v{T+2}, v{T+3}')
e('s_cbranch_vccz L_C1_OK')
e('s_add_u32 s99, s99, 1')
e(f's_cmp_lt_u32 s99, {MAXPOLL}')
e('s_cbranch_scc1 L_C1_RETRY')
lab('L_C1_OK')
H = S
e(f'v_lshlrev_b32 v{H}, 16, v{T}')
e(f'v_and_b32 v{H+1}, 0xffff0000, v{T}')
e(f'v_lshlrev_b32 v{H+2}, 16, v{T+1}')
e(f'v_and_b32 v{H+3}, 0xffff0000, v{T+1}')
for j in range(4):
    bf16_round(AP+j, T+2)
    e(f'v_add_f32 v{H+j}, v{H+j}, v{AP+j}')
    bf16_round(H+j, T+2)
e(f'ds_write_b128 v{a_}, v[{H}:{H+3}] offset:{HB}')
mean, var, tq, rcp = T+3, T+4, T+5, T+6
e(f'v_add_f32 v{mean}, v{H}, v{H+1}')
e(f'v_add_f32 v{tq}, v{H+2}, v{H+3}')
e(f'v_add_f32 v{mean}, v{mean}, v{tq}')
wave_allreduce_sum(mean, tq)
e(f'v_lshlrev_b32 v{c_}, 2, v{WAVE}')
e(f'ds_write_b32 v{c_}, v{mean} offset:{WS1}')
e('s_waitcnt lgkmcnt(0)')
lab('L_C1_SKIP')
e('s_barrier')
e('s_cmp_lt_u32 s14, 4')
e('s_cbranch_scc1 L_C2_SKIP')
e(f'v_and_b32 v{part_}, 6, v{WAVE}')
e(f'v_lshlrev_b32 v{part_}, 2, v{part_}')
e(f'ds_read_b64 v[{P}:{P+1}], v{part_} offset:{WS1}')
e('s_waitcnt lgkmcnt(0)')
e(f'v_add_f32 v{mean}, v{P}, v{P+1}')
e(f'v_mul_f32 v{mean}, {INV512:#x}, v{mean}')
for j in range(4):
    e(f'v_sub_f32 v{H+4+j}, v{H+j}, v{mean}')
e(f'v_mul_f32 v{var}, v{H+4}, v{H+4}')
for j in range(1, 4):
    e(f'v_fmac_f32 v{var}, v{H+4+j}, v{H+4+j}')
e('s_nop 1')
wave_allreduce_sum(var, tq)
e(f'ds_write_b32 v{c_}, v{var} offset:{WS2}')
e('s_waitcnt lgkmcnt(0)')
lab('L_C2_SKIP')
e('s_barrier')
e('s_cmp_lt_u32 s14, 4')
e('s_cbranch_scc1 L_C3_SKIP')
e(f'ds_read_b64 v[{P}:{P+1}], v{part_} offset:{WS2}')
e('s_waitcnt lgkmcnt(0)')
e(f'v_add_f32 v{var}, v{P}, v{P+1}')
e(f'v_mul_f32 v{var}, {INV512:#x}, v{var}')
ln_finish(mean, var, tq, rcp)
for j in range(4):
    ln_elem(H+4+j, H+j, mean, var, rcp, tq, P+2, P+3)
e(f'ds_write_b128 v{a_}, v[{H+4}:{H+7}] offset:{HN}')
e('s_waitcnt lgkmcnt(0)')
lab('L_C3_SKIP')
e('s_barrier')
e('s_cmp_ge_u32 s14, 4')
e('s_cbranch_scc1 L_DONE')
e(f'v_lshrrev_b32 v{a_}, 1, v0')
e(f'v_lshlrev_b32 v{a_}, 2, v{a_}')
for b in range(2):
    for i in range(4):
        e(f'ds_read_b32 v{XS+b*4+i}, v{a_} offset:{HN+b*2048+i*512}')
e('s_waitcnt lgkmcnt(0)')
for i in range(4):
    unpack8(WGUr+4*i, T)
    for b in range(2):
        for j in range(4):
            pk_bc('mul' if i == 0 else 'fma', A+b*8+2*j, T+2*j, XS+b*4+i)
reduce_scatter16(A, (8, 4, 2))
e(f'v_lshlrev_b32 v{a_}, 7, v{WAVE}')
e(f'v_and_b32 v{c_}, 1, v0')
e(f'v_lshl_add_u32 v{a_}, v{c_}, 6, v{a_}')
e(f'v_and_b32 v{c_}, 48, v0')
e(f'v_add_u32 v{a_}, v{a_}, v{c_}')
e(f'ds_write_b128 v{a_}, v[{A}:{A+3}] offset:{REDC}')
e('s_waitcnt lgkmcnt(0)')
e('s_barrier')
e('s_cmp_lg_u32 s14, 0')
e('s_cbranch_scc1 L_C4_SKIP')
e('s_mov_b64 exec, 0xffff')
e(f'v_lshlrev_b32 v{a_}, 2, v0')
for w in range(4):
    e(f'ds_read_b32 v{A+w}, v{a_} offset:{REDC+w*128}')
    e(f'ds_read_b32 v{A+4+w}, v{a_} offset:{REDC+w*128+64}')
e('s_waitcnt lgkmcnt(0)')
for w in range(1, 4):
    e(f'v_add_f32 v{A}, v{A}, v{A+w}')
    e(f'v_add_f32 v{A+4}, v{A+4}, v{A+4+w}')
bf16_round(A, T)
bf16_round(A+4, T)
e(f'v_mul_f32 v{T+1}, s98, v{A}')
e(f'v_exp_f32 v{T+1}, -v{T+1}')
e('s_nop 0')
e(f'v_add_f32 v{T+1}, 1.0, v{T+1}')
e(f'v_rcp_f32 v{T+2}, v{T+1}')
e('s_nop 0')
e(f'v_mul_f32 v{T+3}, v{A}, v{T+2}')
e(f'v_fma_f32 v{T+4}, -v{T+3}, v{T+1}, v{A}')
e(f'v_fma_f32 v{T+3}, v{T+4}, v{T+2}, v{T+3}')
bf16_round(T+3, T)
e(f'v_mul_f32 v{T+3}, v{T+3}, v{A+4}')
bf16_round(T+3, T)
e(f'v_lshrrev_b32 v{a_}, 3, v0')
e(f'v_and_b32 v{c_}, 7, v0')
e(f'v_lshlrev_b32 v{a_}, 13, v{a_}')
e(f'v_lshl_add_u32 v{a_}, v{c_}, 2, v{a_}')
e('s_lshl_b32 s93, s12, 5')
e(f's_add_u32 s93, s93, {GU_BUF}')
e(f'buffer_store_dword v{T+3}, v{a_}, s[{SWS}:{SWS+3}], s93 offen sc1')
e('s_mov_b64 exec, -1')
stamp()
lab('L_C4_SKIP')
e('s_cmp_ge_u32 s11, 8')
e('s_cbranch_scc1 L_DONE')
e(f'v_lshlrev_b32 v{a_}, 2, v0')
G = 48
e('s_mov_b32 s99, 0')
lab('L_D_RETRY')
for b in range(2):
    for i in range(7):
        e(f's_mov_b32 s93, {GU_BUF + b*8192 + i*1024}')
        e(f'buffer_load_dword v{G+b*7+i}, v{a_}, s[{SWS}:{SWS+3}], s93 offen sc1')
e('s_waitcnt vmcnt(0)')
e(f'v_add_f32 v{T}, v{G}, v{G+1}')
e(f'v_add_f32 v{T+1}, v{G+2}, v{G+3}')
for i in range(4, 14, 2):
    e(f'v_add_f32 v{T}, v{T}, v{G+i}')
    e(f'v_add_f32 v{T+1}, v{T+1}, v{G+i+1}')
e(f'v_cmp_u_f32 vcc, v{T}, v{T+1}')
e('s_cbranch_vccz L_D_OK')
e('s_add_u32 s99, s99, 1')
e(f's_cmp_lt_u32 s99, {MAXPOLL}')
e('s_cbranch_scc1 L_D_RETRY')
lab('L_D_OK')
stamp()
for i in range(7):
    unpack8(WDr+4*i, T)
    for b in range(2):
        for j in range(4):
            pk_bc('mul' if i == 0 else 'fma', A+b*8+2*j, T+2*j, G+b*7+i)
reduce_scatter16(A, (8, 4, 2, 1))
e(f'v_lshlrev_b32 v{a_}, 6, v{WAVE}')
e(f'v_and_b32 v{c_}, 48, v0')
e(f'v_add_u32 v{a_}, v{a_}, v{c_}')
e(f'ds_write_b128 v{a_}, v[{A}:{A+3}] offset:{REDD}')
e('s_waitcnt lgkmcnt(0)')
e('s_barrier')
e('s_cmp_lg_u32 s14, 0')
e('s_cbranch_scc1 L_DONE')
e('s_mov_b64 exec, 0xffff')
e(f'v_lshlrev_b32 v{a_}, 2, v0')
for w in range(4):
    e(f'ds_read_b32 v{A+w}, v{a_} offset:{REDD+w*64}')
e(f'v_lshrrev_b32 v{part_}, 3, v0')
e(f'v_and_b32 v{c_}, 7, v0')
e(f'v_lshlrev_b32 v{part_}, 9, v{part_}')
e(f'v_add_u32 v{part_}, v{part_}, v{c_}')
e('s_lshl_b32 s93, s13, 3')
e(f'v_add_u32 v{part_}, s93, v{part_}')
e(f'v_lshlrev_b32 v{VX}, 2, v{part_}')
e(f'ds_read_b32 v{T}, v{VX} offset:{HB}')
e('s_waitcnt lgkmcnt(0)')
for w in range(1, 4):
    e(f'v_add_f32 v{A}, v{A}, v{A+w}')
bf16_round(A, T+1)
e(f'v_add_f32 v{A}, v{A}, v{T}')
e(f'v_cvt_pk_bf16_f32 v{A}, v{A}, v{A}')
e(f'v_lshlrev_b32 v{VX}, 1, v{part_}')
e(f'buffer_store_short v{A}, v{VX}, s[{SOUT}:{SOUT+3}], 0 offen')
e('s_mov_b64 exec, -1')
stamp()
lab('L_DONE')
e('s_endpgm')

hdr = list(HDR)
hdr.append(f'; @launch grid=(256,1,1) block=(1024,1,1) lds={LDS_TOTAL}')
hdr.append('.amdgcn_target "amdgcn-amd-amdhsa--gfx950"')
txt = '\n'.join(hdr) + '\n' + '\n'.join(out) + '\n'
txt += f'''.section .rodata,"a"
.p2align 6
.amdhsa_kernel {NAME}
  .amdhsa_next_free_vgpr 128
  .amdhsa_next_free_sgpr 102
  .amdhsa_accum_offset 128
  .amdhsa_group_segment_fixed_size 0
  .amdhsa_kernarg_size 96
  .amdhsa_user_sgpr_count 2
  .amdhsa_user_sgpr_kernarg_segment_ptr 1
  .amdhsa_system_sgpr_workgroup_id_x 1
  .amdhsa_float_denorm_mode_32 3
.end_amdhsa_kernel
'''
open(sys.argv[1] if len(sys.argv) > 1 else 'sequential_preLN__mha_block_cached__swiglu_ffn__decode.s', 'w').write(txt)
```

```python
import struct, sys, os

HDR = open('sequential_preLN__mha_block_cached__swiglu_ffn__decode.s.ref').read().split('\n')
HDR = [l for l in HDR if l.startswith(';') and '@launch' not in l and 'Override' not in l and 'grid=ceil' not in l]
SLEEP = int(os.environ.get('SLEEP', '4'))
STAMP = int(os.environ.get('STAMP', '0'))
STAMP_BASE = 0xE0000
MAXPOLL = 0x40000

def f2u(x):
    return struct.unpack('<I', struct.pack('<f', x))[0]

L2E = f2u(1.4426950408889634)
SCALE = f2u(128 ** -0.5)
EPS = f2u(1e-5)
INV512 = f2u(1.0 / 512)

PART_O = 0
PART_ML = 0x40000
ATTN_PART = 0x80000
GU_BUF = 0xC0000
WS_SIZE = 0x100000
CNT_CLEAN = 128; CNT_HB = 0

out = []
def e(s):
    out.append('    ' + s)
def lab(s):
    out.append(s + ':')

def srd(d, base_lo, base_hi, nrec):
    e(f's_mov_b32 s{d}, {base_lo}')
    e(f's_and_b32 s{d+1}, {base_hi}, 0xffff')
    e(f's_mov_b32 s{d+2}, {nrec}')
    e(f's_mov_b32 s{d+3}, 0x00020000')

def bf16_round(v, tmp):
    e(f'v_cvt_pk_bf16_f32 v{tmp}, v{v}, v{v}')
    e(f'v_lshlrev_b32 v{v}, 16, v{tmp}')

def row_reduce(vals, rots=(8, 4, 2, 1), op='add'):
    for rot in rots:
        if len(vals) < 3:
            e('s_nop 1')
        for v in vals:
            e(f'v_{op}_f32_dpp v{v}, v{v}, v{v} row_ror:{rot} row_mask:0xf bank_mask:0xf')
    e('s_nop 1')

def cross_row_allreduce(vals, tmps):
    for ins in ('v_permlane16_swap_b32', 'v_permlane32_swap_b32'):
        for v, t in zip(vals, tmps):
            e(f'v_mov_b32 v{t}, v{v}')
        e('s_nop 1')
        for v, t in zip(vals, tmps):
            e(f'{ins} v{v}, v{t}')
        e('s_nop 1')
        for v, t in zip(vals, tmps):
            e(f'v_add_f32 v{v}, v{v}, v{t}')
        e('s_nop 1')

def unpack8(src, dst):
    for j in range(4):
        e(f'v_lshlrev_b32 v{dst+2*j}, 16, v{src+j}')
        e(f'v_and_b32 v{dst+2*j+1}, 0xffff0000, v{src+j}')

def pk_bc(op, acc, src, sc):
    if sc % 2 == 0:
        pair = f'v[{sc}:{sc+1}]'; sel = 0
    else:
        pair = f'v[{sc-1}:{sc}]'; sel = 1
    if op == 'fma':
        mods = 'op_sel_hi:[1,0,1]' if sel == 0 else 'op_sel:[0,1,0] op_sel_hi:[1,1,1]'
        e(f'v_pk_fma_f32 v[{acc}:{acc+1}], v[{src}:{src+1}], {pair}, v[{acc}:{acc+1}] {mods}')
    else:
        mods = 'op_sel_hi:[1,0]' if sel == 0 else 'op_sel:[0,1] op_sel_hi:[1,1]'
        e(f'v_pk_mul_f32 v[{acc}:{acc+1}], v[{src}:{src+1}], {pair} {mods}')

stamp_n = [0]
def stamp():
    if not STAMP: return
    i = stamp_n[0]; stamp_n[0] += 1
    e('s_cmp_lg_u32 s14, 0')
    e(f's_cbranch_scc1 L_ST_{i}')
    e('s_memrealtime s[4:5]')
    e('s_waitcnt lgkmcnt(0)')
    e('s_mov_b64 s[8:9], exec')
    e('s_mov_b64 exec, 1')
    if STAMP == 1:
        e('s_lshl_b32 s6, s2, 7')
        e(f's_add_u32 s6, s6, {STAMP_BASE + i*8}')
        e('v_mov_b32 v126, s4')
        e('v_mov_b32 v127, s5')
        e('v_mov_b32 v3, 0')
        e('buffer_store_dwordx2 v[126:127], v3, s[36:39], s6 offen')
    else:
        e('v_mov_b32 v126, s4')
        e(f'v_mov_b32 v3, {4*i}')
        e('buffer_atomic_umax v126, v3, s[40:43], 0 offen')
        if i == 0:
            e('s_not_b32 s4, s4')
            e('v_mov_b32 v127, s4')
            e('v_mov_b32 v3, 60')
            e('buffer_atomic_umax v127, v3, s[40:43], 0 offen')
    e('s_mov_b64 exec, s[8:9]')
    lab(f'L_ST_{i}')

NAME = 'sequential_preLN__mha_block_cached__swiglu_ffn__decode_kernel'
out.append('.text')
out.append(f'.globl {NAME}')
out.append('.p2align 8')
out.append(f'.type {NAME},@function')
lab(NAME)

XN = 0; QRED = 2048; QB = 10240; MB = 10496; LB = 10752; ACC = 11008; RED2 = 43776; LP = 47872
XO = 47936; REDB = 49984; HN = 54080; HB = 58176; WS1 = 62272; WS2 = 62336; REDC = 62400; REDD = 64448
LDS_TOTAL = 65472

LANE = 1; WAVE = 2; VX = 3
Q = 4; ACCV = 8; S = 16; P = 24; T = 32
VM = 40; VL = 41; VMN = 42; VAL = 44; VOFF = 46; VOFF2 = 47
WO = 48; WGU = 52; WD = 56
KR = 64; VR = 96
SK = 20; SV = 24; SX = 28; SWQ = 32; SWS = 36; SDBG = 40; SWO = 44; SG = 48; SU = 52; SD = 56; SOUT = 60
e('s_cmp_ge_u32 s2, 256')
e('s_cbranch_scc1 L_DONE')
e('s_load_dwordx16 s[64:79], s[0:1], 0')
e('s_load_dwordx8 s[80:87], s[0:1], 64')
e(f'v_and_b32 v{LANE}, 63, v0')
e(f'v_lshrrev_b32 v{WAVE}, 6, v0')
e('s_nop 0')
e(f'v_readfirstlane_b32 s14, v{WAVE}')
e('s_lshr_b32 s15, s2, 2')
e('s_lshr_b32 s16, s15, 5')
e('s_and_b32 s17, s15, 31')
e('s_and_b32 s10, s2, 7')
e('s_lshr_b32 s11, s2, 3')
e('s_and_b32 s90, s11, 1')
e('s_lshl_b32 s91, s10, 1')
e('s_add_u32 s90, s90, s91')
e('s_lshr_b32 s91, s11, 1')
e('s_mul_i32 s12, s10, 28')
e('s_add_u32 s12, s12, s11')
e('s_lshl_b32 s13, s10, 3')
e('s_add_u32 s13, s13, s11')
e('s_waitcnt lgkmcnt(0)')
e('s_lshl_b32 s18, s2, 20')
e('s_lshr_b32 s19, s2, 12')
e('s_add_u32 s88, s66, s18')
e('s_addc_u32 s89, s67, s19')
srd(SK, 's88', 's89', 0x100000)
e('s_add_u32 s88, s68, s18')
e('s_addc_u32 s89, s69, s19')
srd(SV, 's88', 's89', 0x100000)
e('s_lshl_b32 s18, s16, 10')
e('s_add_u32 s88, s64, s18')
e('s_addc_u32 s89, s65, 0')
srd(SX, 's88', 's89', 1024)
e('s_lshl_b32 s18, s17, 8')
e('s_add_u32 s88, s70, s18')
e('s_addc_u32 s89, s71, 0')
e('s_sub_u32 s19, 0x400000, s18')
srd(SWQ, 's88', 's89', 's19')
srd(SWS, 's86', 's87', WS_SIZE)
srd(SDBG, 's84', 's85', 256)
e('s_lshl_b32 s18, s91, 18')
e('s_lshl_b32 s19, s90, 6')
e('s_add_u32 s18, s18, s19')
e('s_add_u32 s88, s72, s18')
e('s_addc_u32 s89, s73, 0')
e('s_sub_u32 s19, 0x400000, s18')
srd(SWO, 's88', 's89', 's19')
e('s_lshl_b32 s18, s12, 4')
e(f's_sub_u32 s19, {512*3584}, s18')
e('s_cmp_lt_u32 s11, 28')
e('s_cselect_b32 s19, s19, 0')
e('s_cselect_b32 s18, s18, 0')
e('s_add_u32 s88, s76, s18')
e('s_addc_u32 s89, s77, 0')
srd(SG, 's88', 's89', 's19')
e('s_add_u32 s88, s78, s18')
e('s_addc_u32 s89, s79, 0')
srd(SU, 's88', 's89', 's19')
e('s_lshl_b32 s18, s13, 4')
e(f's_sub_u32 s19, {1792*1024}, s18')
e('s_cmp_lt_u32 s11, 8')
e('s_cselect_b32 s19, s19, 0')
e('s_cselect_b32 s18, s18, 0')
e('s_add_u32 s88, s80, s18')
e('s_addc_u32 s89, s81, 0')
srd(SD, 's88', 's89', 's19')
srd(SOUT, 's82', 's83', 2048)
stamp()

e('s_cmp_ge_u32 s14, 2')
e('s_cbranch_scc1 L_CLEAN_SKIP')
e(f'v_mov_b32 v{T}, -1')
e(f'v_mov_b32 v{T+1}, -1')
e(f'v_lshlrev_b32 v{VX}, 2, v0')
e('s_lshl_b32 s93, s2, 9')
e(f'buffer_store_dword v{T}, v{VX}, s[{SWS}:{SWS+3}], s93 offen offset:{PART_O} sc1')
e('s_cmp_lg_u32 s14, 0')
e('s_cbranch_scc1 L_CLEAN_SKIP')
e(f'v_lshrrev_b32 v{VX}, 5, v0')
e(f'v_and_b32 v{T+2}, 31, v0')
e(f'v_lshlrev_b32 v{VX}, 11, v{VX}')
e(f'v_lshl_add_u32 v{VX}, v{T+2}, 2, v{VX}')
e('s_lshl_b32 s93, s91, 12')
e('s_lshl_b32 s92, s90, 7')
e('s_add_u32 s93, s93, s92')
e(f's_add_u32 s93, s93, {ATTN_PART}')
e(f'buffer_store_dword v{T}, v{VX}, s[{SWS}:{SWS+3}], s93 offen sc1')
e('s_mov_b64 exec, 0xffff')
e(f'v_lshrrev_b32 v{VX}, 3, v0')
e(f'v_and_b32 v{T+2}, 7, v0')
e(f'v_lshlrev_b32 v{VX}, 13, v{VX}')
e(f'v_lshl_add_u32 v{VX}, v{T+2}, 2, v{VX}')
e('s_lshl_b32 s93, s12, 5')
e(f's_add_u32 s93, s93, {GU_BUF}')
e('s_cmp_ge_u32 s11, 28')
e('s_cbranch_scc1 L_CLEAN_NOGU')
e(f'buffer_store_dword v{T}, v{VX}, s[{SWS}:{SWS+3}], s93 offen sc1')
lab('L_CLEAN_NOGU')
e('s_mov_b64 exec, 1')
e(f'v_mov_b32 v{VX}, 0')
e('s_lshl_b32 s93, s2, 3')
e(f's_add_u32 s93, s93, {PART_ML}')
e(f'buffer_store_dwordx2 v[{T}:{T+1}], v{VX}, s[{SWS}:{SWS+3}], s93 offen sc1')
e('s_mov_b64 exec, -1')
e('s_nop 1')
lab('L_CLEAN_SKIP')

e(f'v_lshlrev_b32 v{VX}, 4, v{LANE}')
e(f'buffer_load_dwordx4 v[{T}:{T+3}], v{VX}, s[{SX}:{SX+3}], 0 offen')
e(f'v_lshrrev_b32 v{VX}, 4, v0')
e(f'v_lshlrev_b32 v{VX}, 13, v{VX}')
e(f'v_and_b32 v{VM}, 15, v0')
e(f'v_lshl_add_u32 v{VX}, v{VM}, 4, v{VX}')
for i in range(8):
    e(f's_mov_b32 s93, {i*524288}')
    e(f'buffer_load_dwordx4 v[{VR+4*i}:{VR+4*i+3}], v{VX}, s[{SWQ}:{SWQ+3}], s93 offen')
e(f'v_lshlrev_b32 v{VOFF}, 13, v{WAVE}')
e(f'v_lshl_add_u32 v{VOFF}, v{LANE}, 4, v{VOFF}')
e(f'v_add_u32 v{VOFF2}, 4096, v{VOFF}')
e('s_mov_b32 s94, 0')
def kv_loads(R, srdb, soff):
    for i in range(8):
        vo = VOFF if i < 4 else VOFF2
        e(f'buffer_load_dwordx4 v[{R+4*i}:{R+4*i+3}], v{vo}, s[{srdb}:{srdb+3}], {soff} offen offset:{(i%4)*1024} nt')
kv_loads(KR, SK, 's94')

e('s_waitcnt vmcnt(16)')
X = S; D = P
t0, t1, t2, t3, t4, t5 = 40, 41, 42, 43, 44, 45
unpack8(T, X)
e(f'v_add_f32 v{t0}, v{X}, v{X+1}')
for j in range(2, 8):
    e(f'v_add_f32 v{t0}, v{t0}, v{X+j}')
def wave_allreduce_sum(v, t):
    row_reduce([v])
    cross_row_allreduce([v], [t])
def ln_finish(mean, var, tmp, rcp):
    bf16_round(var, tmp)
    bf16_round(mean, tmp)
    e(f'v_add_f32 v{var}, {EPS:#x}, v{var}')
    bf16_round(var, tmp)
    e(f'v_sqrt_f32 v{var}, v{var}')
    e('s_nop 0')
    bf16_round(var, tmp)
    e(f'v_rcp_f32 v{rcp}, v{var}')
    e('s_nop 0')
def ln_elem(dst, src, mean, den, rcp, ta, tb, tc):
    e(f'v_sub_f32 v{dst}, v{src}, v{mean}')
    bf16_round(dst, ta)
    e(f'v_mul_f32 v{tb}, v{dst}, v{rcp}')
    e(f'v_fma_f32 v{tc}, -v{tb}, v{den}, v{dst}')
    e(f'v_fma_f32 v{dst}, v{tc}, v{rcp}, v{tb}')
    bf16_round(dst, ta)
wave_allreduce_sum(t0, t1)
e(f'v_mul_f32 v{t0}, {INV512:#x}, v{t0}')
for j in range(8):
    e(f'v_sub_f32 v{D+j}, v{X+j}, v{t0}')
e(f'v_mul_f32 v{t2}, v{D}, v{D}')
for j in range(1, 8):
    e(f'v_fmac_f32 v{t2}, v{D+j}, v{D+j}')
e('s_nop 1')
wave_allreduce_sum(t2, t1)
e(f'v_mul_f32 v{t2}, {INV512:#x}, v{t2}')
ln_finish(t0, t2, t1, t3)
for j in range(8):
    ln_elem(D+j, X+j, t0, t2, t3, t1, t4, t5)
e(f'v_lshlrev_b32 v{VX}, 5, v{LANE}')
e(f'ds_write_b128 v{VX}, v[{D}:{D+3}] offset:{XN}')
e(f'ds_write_b128 v{VX}, v[{D+4}:{D+7}] offset:{XN+16}')
e('s_waitcnt lgkmcnt(0)')
e('s_barrier')
e('s_cmp_lg_u32 s14, 0')
e('s_cbranch_scc1 L_CS_SKIP')
e('s_mov_b64 exec, 1')
e(f'v_mov_b32 v{VX}, {CNT_CLEAN}')
e(f'v_mov_b32 v{t0}, 1')
e(f'buffer_atomic_add v{t0}, v{VX}, s[{SDBG}:{SDBG+3}], 0 offen')
e('s_mov_b64 exec, -1')
lab('L_CS_SKIP')
e(f'v_lshrrev_b32 v{VX}, 4, v0')
e(f'v_lshlrev_b32 v{VX}, 2, v{VX}')
for i in range(8):
    e(f'ds_read_b32 v{S+i}, v{VX} offset:{XN+i*256}')
e('s_waitcnt vmcnt(8) lgkmcnt(0)')
for i in range(8):
    unpack8(VR+4*i, T)
    for j in range(4):
        pk_bc('mul' if i == 0 else 'fma', ACCV+2*j, T+2*j, S+i)
kv_loads(VR, SV, 's94')
e('s_nop 1')
cross_row_allreduce([ACCV+j for j in range(8)], [T+j for j in range(8)])
e(f'v_lshlrev_b32 v{VX}, 9, v{WAVE}')
e(f'v_and_b32 v{t0}, 15, v0')
e(f'v_lshl_add_u32 v{VX}, v{t0}, 5, v{VX}')
e(f'ds_write_b128 v{VX}, v[{ACCV}:{ACCV+3}] offset:{QRED}')
e(f'ds_write_b128 v{VX}, v[{ACCV+4}:{ACCV+7}] offset:{QRED+16}')
e('s_waitcnt lgkmcnt(0)')
e('s_barrier')
e('s_cmp_ge_u32 s14, 2')
e('s_cbranch_scc1 L_QSKIP')
e(f'v_lshlrev_b32 v{VX}, 2, v0')
for w in range(16):
    e(f'ds_read_b32 v{S+w}, v{VX} offset:{QRED+w*512}')
e('s_waitcnt lgkmcnt(0)')
for w in range(1, 16):
    e(f'v_add_f32 v{S}, v{S}, v{S+w}')
e(f'v_cvt_pk_bf16_f32 v{S}, v{S}, v{S}')
e(f'v_lshlrev_b32 v{VX}, 1, v0')
e(f'ds_write_b16 v{VX}, v{S} offset:{QB}')
e('s_waitcnt lgkmcnt(0)')
lab('L_QSKIP')
e('s_barrier')
e(f'v_and_b32 v{VX}, 15, v0')
e(f'v_lshlrev_b32 v{VX}, 4, v{VX}')
e(f'ds_read_b128 v[{Q}:{Q+3}], v{VX} offset:{QB}')
e(f'v_mov_b32 v{VM}, 0xff800000')
e(f'v_mov_b32 v{VL}, 0')
for j in range(8):
    e(f'v_mov_b32 v{ACCV+j}, 0')
e(f's_mov_b32 s96, {SCALE:#x}')
e(f's_mov_b32 s97, {SCALE:#x}')
e(f's_mov_b32 s98, {L2E:#x}')
e('s_waitcnt lgkmcnt(0)')
lab('L_LOOP')
e('s_add_u32 s95, s94, 0x20000')
e('s_waitcnt vmcnt(8)')
for j in range(4):
    for i in range(8):
        src2 = '0' if j == 0 else f'v{S+i}'
        e(f'v_dot2_f32_bf16 v{S+i}, v{KR+4*i+j}, v{Q+j}, {src2}')
kv_loads(KR, SK, 's95')
row_reduce([S+i for i in range(8)])
for i in range(0, 8, 2):
    e(f'v_cvt_pk_bf16_f32 v{T+i}, v{S+i}, v{S+i+1}')
for i in range(0, 8, 2):
    e(f'v_lshlrev_b32 v{S+i}, 16, v{T+i}')
    e(f'v_and_b32 v{S+i+1}, 0xffff0000, v{T+i}')
for i in range(0, 8, 2):
    e(f'v_pk_mul_f32 v[{S+i}:{S+i+1}], v[{S+i}:{S+i+1}], s[96:97]')
for i in range(0, 8, 2):
    e(f'v_cvt_pk_bf16_f32 v{T+i}, v{S+i}, v{S+i+1}')
for i in range(0, 8, 2):
    e(f'v_lshlrev_b32 v{S+i}, 16, v{T+i}')
    e(f'v_and_b32 v{S+i+1}, 0xffff0000, v{T+i}')
e(f'v_max3_f32 v{VMN}, v{S}, v{S+1}, v{VM}')
e(f'v_max3_f32 v{T}, v{S+2}, v{S+3}, v{S+4}')
e(f'v_max3_f32 v{T+1}, v{S+5}, v{S+6}, v{S+7}')
e(f'v_max3_f32 v{VMN}, v{VMN}, v{T}, v{T+1}')
e(f'v_mul_f32 v{T+2}, s98, v{VMN}')
e(f'v_fma_f32 v{VAL}, v{VM}, s98, -v{T+2}')
e(f'v_exp_f32 v{VAL}, v{VAL}')
for i in range(8):
    e(f'v_fma_f32 v{P+i}, v{S+i}, s98, -v{T+2}')
for i in range(8):
    e(f'v_exp_f32 v{P+i}, v{P+i}')
e(f'v_mov_b32 v{VAL+1}, v{VAL}')
e(f'v_mov_b32 v{VM}, v{VMN}')
e(f'v_mul_f32 v{VL}, v{VL}, v{VAL}')
for j in range(4):
    e(f'v_pk_mul_f32 v[{ACCV+2*j}:{ACCV+2*j+1}], v[{ACCV+2*j}:{ACCV+2*j+1}], v[{VAL}:{VAL+1}]')
for i in range(8):
    e(f'v_add_f32 v{VL}, v{VL}, v{P+i}')
e('s_waitcnt vmcnt(8)')
for i in range(8):
    unpack8(VR+4*i, T)
    for j in range(4):
        pk_bc('fma', ACCV+2*j, T+2*j, P+i)
kv_loads(VR, SV, 's95')
e('s_mov_b32 s94, s95')
e('s_cmp_lt_u32 s94, 0x100000')
e('s_cbranch_scc1 L_LOOP')

WOr = 64; WGUr = 80; WDr = 96
c_, part_, a_ = 40, 41, 44
TID4 = 45
e('s_cmp_ge_u32 s14, 4')
e('s_cbranch_scc1 L_WLOAD_SKIP')
e(f'v_lshrrev_b32 v{VX}, 2, v0')
e(f'v_lshlrev_b32 v{VX}, 10, v{VX}')
e(f'v_and_b32 v{T}, 3, v0')
e(f'v_lshl_add_u32 v{VX}, v{T}, 4, v{VX}')
for i in range(4):
    e(f's_mov_b32 s93, {i*65536}')
    e(f'buffer_load_dwordx4 v[{WOr+4*i}:{WOr+4*i+3}], v{VX}, s[{SWO}:{SWO+3}], s93 offen')
e(f'v_lshrrev_b32 v{VX}, 1, v0')
e('s_movk_i32 s93, 3584')
e(f'v_mul_lo_u32 v{VX}, v{VX}, s93')
e('s_mov_b32 s92, 0x55555555')
e('s_mov_b32 s93, 0x55555555')
e('s_mov_b64 exec, s[92:93]')
for i in range(4):
    e(f's_mov_b32 s99, {i*128*3584}')
    e(f'buffer_load_dwordx4 v[{WGUr+4*i}:{WGUr+4*i+3}], v{VX}, s[{SG}:{SG+3}], s99 offen')
e('s_not_b64 exec, exec')
for i in range(4):
    e(f's_mov_b32 s99, {i*128*3584}')
    e(f'buffer_load_dwordx4 v[{WGUr+4*i}:{WGUr+4*i+3}], v{VX}, s[{SU}:{SU+3}], s99 offen')
e('s_mov_b64 exec, -1')
e(f'v_lshlrev_b32 v{VX}, 10, v0')
for i in range(7):
    e(f's_mov_b32 s93, {i*262144}')
    e(f'buffer_load_dwordx4 v[{WDr+4*i}:{WDr+4*i+3}], v{VX}, s[{SD}:{SD+3}], s93 offen')
lab('L_WLOAD_SKIP')
stamp()
e(f'v_lshrrev_b32 v{VX}, 4, v0')
e(f'v_lshlrev_b32 v{VAL}, 9, v{VX}')
e(f'v_and_b32 v{VAL+1}, 15, v0')
e(f'v_lshl_add_u32 v{VAL}, v{VAL+1}, 5, v{VAL}')
e(f'ds_write_b128 v{VAL}, v[{ACCV}:{ACCV+3}] offset:{ACC}')
e(f'ds_write_b128 v{VAL}, v[{ACCV+4}:{ACCV+7}] offset:{ACC+16}')
e(f'v_lshlrev_b32 v{VX}, 2, v{VX}')
e(f'ds_write_b32 v{VX}, v{VM} offset:{MB}')
e(f'ds_write_b32 v{VX}, v{VL} offset:{LB}')
e('s_waitcnt lgkmcnt(0)')
e('s_barrier')
e(f'v_lshlrev_b32 v{VX}, 4, v{VAL+1}')
e(f'ds_read_b128 v[{ACCV}:{ACCV+3}], v{VX} offset:{MB}')
e(f'v_and_b32 v{c_}, 127, v0')
e(f'v_lshrrev_b32 v{part_}, 7, v0')
e(f'v_lshlrev_b32 v{a_}, 5, v{part_}')
e(f'ds_read_b128 v[{S}:{S+3}], v{a_} offset:{MB}')
e(f'ds_read_b128 v[{S+4}:{S+7}], v{a_} offset:{MB+16}')
e(f'ds_read_b128 v[{P}:{P+3}], v{a_} offset:{LB}')
e(f'ds_read_b128 v[{P+4}:{P+7}], v{a_} offset:{LB+16}')
e(f'v_lshlrev_b32 v{a_}, 12, v{part_}')
e(f'v_lshl_add_u32 v{a_}, v{c_}, 2, v{a_}')
for j in range(8):
    e(f'ds_read_b32 v{T+j}, v{a_} offset:{ACC+j*512}')
e('s_waitcnt lgkmcnt(0)')
e(f'v_max3_f32 v{VMN}, v{ACCV}, v{ACCV+1}, v{ACCV+2}')
e(f'v_max_f32 v{VMN}, v{VMN}, v{ACCV+3}')
row_reduce([VMN], op='max')
e(f'v_mul_f32 v{ACCV}, s98, v{VMN}')
for j in range(8):
    e(f'v_fma_f32 v{S+j}, v{S+j}, s98, -v{ACCV}')
for j in range(8):
    e(f'v_exp_f32 v{S+j}, v{S+j}')
e('s_nop 0')
e(f'v_mul_f32 v{ACCV+1}, v{S}, v{T}')
e(f'v_mul_f32 v{ACCV+2}, v{S}, v{P}')
for j in range(1, 8):
    e(f'v_fmac_f32 v{ACCV+1}, v{S+j}, v{T+j}')
    e(f'v_fmac_f32 v{ACCV+2}, v{S+j}, v{P+j}')
e(f'v_lshlrev_b32 v{a_}, 9, v{part_}')
e(f'v_lshl_add_u32 v{a_}, v{c_}, 2, v{a_}')
e(f'ds_write_b32 v{a_}, v{ACCV+1} offset:{RED2}')
e(f'v_lshlrev_b32 v{a_}, 2, v{part_}')
e(f'ds_write_b32 v{a_}, v{ACCV+2} offset:{LP}')
e('s_waitcnt lgkmcnt(0)')
e('s_barrier')
e('s_cmp_ge_u32 s14, 8')
e('s_cbranch_scc1 L_DONE')
e(f'v_and_b32 v{TID4}, 255, v0')
e('s_cmp_ge_u32 s14, 2')
e('s_cbranch_scc1 L_APUB_SKIP')
e(f'v_lshlrev_b32 v{a_}, 2, v0')
for j in range(8):
    e(f'ds_read_b32 v{T+j}, v{a_} offset:{RED2+j*512}')
e(f'v_mov_b32 v{VX}, 0')
e(f'ds_read_b128 v[{P}:{P+3}], v{VX} offset:{LP}')
e(f'ds_read_b128 v[{P+4}:{P+7}], v{VX} offset:{LP+16}')
e('s_waitcnt lgkmcnt(0)')
for j in range(1, 8):
    e(f'v_add_f32 v{T}, v{T}, v{T+j}')
    e(f'v_add_f32 v{P}, v{P}, v{P+j}')
e('s_lshl_b32 s93, s2, 9')
e(f'buffer_store_dword v{T}, v{a_}, s[{SWS}:{SWS+3}], s93 offen offset:{PART_O} sc1')
e(f'v_mov_b32 v{VMN+1}, v{P}')
e('s_cmp_lg_u32 s14, 0')
e('s_cbranch_scc1 L_APUB_SKIP')
e('s_lshl_b32 s93, s2, 3')
e(f's_add_u32 s93, s93, {PART_ML}')
e('s_mov_b64 exec, 1')
e(f'buffer_store_dwordx2 v[{VMN}:{VMN+1}], v{VX}, s[{SWS}:{SWS+3}], s93 offen sc1')
e('s_mov_b64 exec, -1')
stamp()
lab('L_APUB_SKIP')
e('s_cmp_lg_u32 s14, 4')
e('s_cbranch_scc1 L_P1_SKIP')
e(f'v_mov_b32 v{VX}, {CNT_CLEAN}')
e('s_mov_b32 s92, 0')
lab('L_PCLEAN')
e(f'buffer_load_dword v{VAL}, v{VX}, s[{SDBG}:{SDBG+3}], 0 offen sc1')
e('s_waitcnt vmcnt(0)')
e(f'v_readfirstlane_b32 s93, v{VAL}')
e('s_cmp_ge_u32 s93, 256')
e('s_cbranch_scc1 L_PCLEAN_D')
e(f's_sleep {SLEEP}')
e('s_add_u32 s92, s92, 1')
e(f's_cmp_lt_u32 s92, {MAXPOLL}')
e('s_cbranch_scc1 L_PCLEAN')
lab('L_PCLEAN_D')
e('s_mov_b64 exec, 0xffff')
e(f'v_lshrrev_b32 v{VX}, 3, v{LANE}')
e(f'v_and_b32 v{c_}, 7, v{LANE}')
e(f'v_lshlrev_b32 v{VX}, 10, v{VX}')
e(f'v_lshl_add_u32 v{VX}, v{c_}, 3, v{VX}')
e('s_lshl_b32 s93, s91, 6')
e(f's_add_u32 s93, s93, {PART_ML}')
e('s_mov_b32 s92, 0')
lab('L_PML')
e(f'buffer_load_dwordx2 v[{VAL}:{VAL+1}], v{VX}, s[{SWS}:{SWS+3}], s93 offen sc1')
e('s_waitcnt vmcnt(0)')
e(f'v_cmp_u_f32 vcc, v{VAL}, v{VAL+1}')
e('s_cbranch_vccz L_PML_D')
e(f's_sleep {SLEEP}')
e('s_add_u32 s92, s92, 1')
e(f's_cmp_lt_u32 s92, {MAXPOLL}')
e('s_cbranch_scc1 L_PML')
lab('L_PML_D')
e('s_mov_b64 exec, -1')
e(f'v_and_b32 v{TID4}, 255, v0')
lab('L_P1_SKIP')
e('s_barrier')
stamp()
e('s_cmp_lt_u32 s14, 4')
e('s_cbranch_scc1 L_B1_SKIP')
O = S
ML = KR
e(f'v_lshrrev_b32 v{part_}, 7, v{TID4}')
e(f'v_and_b32 v{c_}, 127, v{TID4}')
e(f'v_lshlrev_b32 v{a_}, 11, v{part_}')
e(f'v_lshl_add_u32 v{a_}, v{c_}, 2, v{a_}')
e(f'v_lshlrev_b32 v{VX}, 5, v{part_}')
e('s_mov_b32 s99, 0')
lab('L_B1_RETRY')
for b in range(2):
    e('s_lshl_b32 s93, s91, 12')
    e(f's_add_u32 s93, s93, {PART_O + b*65536}')
    for s_ in range(4):
        e(f'buffer_load_dword v{O+b*4+s_}, v{a_}, s[{SWS}:{SWS+3}], s93 offen offset:{s_*512} sc1')
    e('s_lshl_b32 s92, s91, 6')
    e(f's_add_u32 s92, s92, {PART_ML + b*1024}')
    e(f'buffer_load_dwordx4 v[{ML+b*8}:{ML+b*8+3}], v{VX}, s[{SWS}:{SWS+3}], s92 offen sc1')
    e(f'buffer_load_dwordx4 v[{ML+b*8+4}:{ML+b*8+7}], v{VX}, s[{SWS}:{SWS+3}], s92 offen offset:16 sc1')
e('s_waitcnt vmcnt(0)')
XR = [VOFF, VOFF2]
for b in range(2):
    m = [ML+b*8+2*s_ for s_ in range(4)]
    l = [ML+b*8+2*s_+1 for s_ in range(4)]
    e(f'v_max3_f32 v{T}, v{m[0]}, v{m[1]}, v{m[2]}')
    e(f'v_max_f32 v{T}, v{T}, v{m[3]}')
    e(f'v_mul_f32 v{T+1}, s98, v{T}')
    for s_ in range(4):
        e(f'v_fma_f32 v{m[s_]}, v{m[s_]}, s98, -v{T+1}')
    for s_ in range(4):
        e(f'v_exp_f32 v{m[s_]}, v{m[s_]}')
    e('s_nop 0')
    e(f'v_mul_f32 v{T+2}, v{m[0]}, v{l[0]}')
    e(f'v_mul_f32 v{T+3}, v{m[0]}, v{O+b*4}')
    for s_ in range(1, 4):
        e(f'v_fmac_f32 v{T+2}, v{m[s_]}, v{l[s_]}')
        e(f'v_fmac_f32 v{T+3}, v{m[s_]}, v{O+b*4+s_}')
    e(f'v_rcp_f32 v{T+4}, v{T+2}')
    e('s_nop 0')
    e(f'v_mul_f32 v{T+5}, v{T+3}, v{T+4}')
    e(f'v_fma_f32 v{T+6}, -v{T+5}, v{T+2}, v{T+3}')
    e(f'v_fma_f32 v{XR[b]}, v{T+6}, v{T+4}, v{T+5}')
e(f'v_cmp_u_f32 vcc, v{XR[0]}, v{XR[1]}')
e('s_cbranch_vccz L_B1_OK')
e('s_add_u32 s99, s99, 1')
e(f's_cmp_lt_u32 s99, {MAXPOLL}')
e('s_cbranch_scc1 L_B1_RETRY')
lab('L_B1_OK')
e(f'v_lshlrev_b32 v{a_}, 2, v{TID4}')
for b in range(2):
    bf16_round(XR[b], T+6)
    e(f'ds_write_b32 v{a_}, v{XR[b]} offset:{XO+b*1024}')
e('s_waitcnt lgkmcnt(0)')
lab('L_B1_SKIP')
e('s_barrier')

def reduce_scatter16(A, rots):
    e('s_nop 1')
    for i in range(8):
        e(f'v_permlane32_swap_b32 v{A+i}, v{A+i+8}')
    e('s_nop 1')
    for i in range(8):
        e(f'v_add_f32 v{A+i}, v{A+i}, v{A+i+8}')
    e('s_nop 1')
    for i in range(4):
        e(f'v_permlane16_swap_b32 v{A+i}, v{A+i+4}')
    e('s_nop 1')
    for i in range(4):
        e(f'v_add_f32 v{A+i}, v{A+i}, v{A+i+4}')
    e('s_nop 1')
    for rot in rots:
        for i in range(4):
            e(f'v_add_f32_dpp v{A+i}, v{A+i}, v{A+i} row_ror:{rot} row_mask:0xf bank_mask:0xf')
    e('s_nop 1')

A = S
XS = 48
e('s_cmp_ge_u32 s14, 4')
e('s_cbranch_scc1 L_B2_SKIP')
e(f'v_and_b32 v{a_}, 0xfc, v0')
for b in range(2):
    for i in range(4):
        e(f'ds_read_b32 v{XS+b*4+i}, v{a_} offset:{XO+b*1024+i*256}')
e('s_waitcnt vmcnt(0) lgkmcnt(0)')
for i in range(4):
    unpack8(WOr+4*i, T)
    for b in range(2):
        for j in range(4):
            pk_bc('mul' if i == 0 else 'fma', A+b*8+2*j, T+2*j, XS+b*4+i)
reduce_scatter16(A, (8, 4))
e(f'v_lshlrev_b32 v{a_}, 8, v{WAVE}')
e(f'v_and_b32 v{c_}, 3, v0')
e(f'v_lshl_add_u32 v{a_}, v{c_}, 5, v{a_}')
e(f'v_and_b32 v{c_}, 32, v0')
e(f'v_lshl_add_u32 v{a_}, v{c_}, 2, v{a_}')
e(f'v_and_b32 v{c_}, 16, v0')
e(f'v_add_u32 v{a_}, v{a_}, v{c_}')
e(f'ds_write_b128 v{a_}, v[{A}:{A+3}] offset:{REDB}')
e('s_waitcnt lgkmcnt(0)')
lab('L_B2_SKIP')
e('s_barrier')
e('s_cmp_lg_u32 s14, 0')
e('s_cbranch_scc1 L_B3_SKIP')
e(f'v_lshlrev_b32 v{a_}, 2, v0')
for w in range(4):
    e(f'ds_read_b32 v{T+w}, v{a_} offset:{REDB+w*256}')
e('s_waitcnt lgkmcnt(0)')
e(f'v_add_f32 v{T}, v{T}, v{T+1}')
e(f'v_add_f32 v{T+2}, v{T+2}, v{T+3}')
e(f'v_add_f32 v{T}, v{T}, v{T+2}')
e(f'v_lshrrev_b32 v{a_}, 5, v0')
e(f'v_and_b32 v{c_}, 31, v0')
e(f'v_lshlrev_b32 v{a_}, 11, v{a_}')
e(f'v_lshl_add_u32 v{a_}, v{c_}, 2, v{a_}')
e('s_lshl_b32 s93, s91, 12')
e('s_lshl_b32 s92, s90, 7')
e('s_add_u32 s93, s93, s92')
e(f's_add_u32 s93, s93, {ATTN_PART}')
e(f'buffer_store_dword v{T}, v{a_}, s[{SWS}:{SWS+3}], s93 offen sc1')
stamp()
lab('L_B3_SKIP')
e('s_cmp_ge_u32 s11, 28')
e('s_cbranch_scc1 L_DONE')
e('s_cmp_lg_u32 s14, 4')
e('s_cbranch_scc1 L_P2_SKIP')
e(f'v_lshlrev_b32 v{VX}, 5, v{LANE}')
e(f's_mov_b32 s93, {PART_ML}')
e('s_mov_b32 s92, 0')
lab('L_PMLA')
e(f'buffer_load_dwordx4 v[{KR}:{KR+3}], v{VX}, s[{SWS}:{SWS+3}], s93 offen sc1')
e(f'buffer_load_dwordx4 v[{KR+4}:{KR+7}], v{VX}, s[{SWS}:{SWS+3}], s93 offen offset:16 sc1')
e('s_waitcnt vmcnt(0)')
for j in range(1, 7):
    e(f'v_add_f32 v{KR}, v{KR}, v{KR+j}')
e(f'v_cmp_u_f32 vcc, v{KR}, v{KR+7}')
e('s_cbranch_vccz L_PMLA_D')
e(f's_sleep {SLEEP}')
e('s_add_u32 s92, s92, 1')
e(f's_cmp_lt_u32 s92, {MAXPOLL}')
e('s_cbranch_scc1 L_PMLA')
lab('L_PMLA_D')
lab('L_P2_SKIP')
e('s_barrier')
stamp()
e('s_cmp_lt_u32 s14, 4')
e('s_cbranch_scc1 L_C1_SKIP')
AP = KR
srd(SX, 's64', 's65', 2048)
e(f'v_lshlrev_b32 v{a_}, 4, v{TID4}')
e(f'v_lshlrev_b32 v{VX}, 3, v{TID4}')
e(f'buffer_load_dwordx2 v[{T}:{T+1}], v{VX}, s[{SX}:{SX+3}], 0 offen')
e('s_mov_b32 s99, 0')
lab('L_C1_RETRY')
for kk in range(16):
    e(f's_mov_b32 s93, {ATTN_PART + kk*4096}')
    e(f'buffer_load_dwordx4 v[{AP+4*kk}:{AP+4*kk+3}], v{a_}, s[{SWS}:{SWS+3}], s93 offen sc1')
e('s_waitcnt vmcnt(0)')
for kk in range(1, 16):
    for j in range(4):
        e(f'v_add_f32 v{AP+j}, v{AP+j}, v{AP+4*kk+j}')
e(f'v_add_f32 v{T+2}, v{AP}, v{AP+1}')
e(f'v_add_f32 v{T+3}, v{AP+2}, v{AP+3}')
e(f'v_cmp_u_f32 vcc, v{T+2}, v{T+3}')
e('s_cbranch_vccz L_C1_OK')
e('s_add_u32 s99, s99, 1')
e(f's_cmp_lt_u32 s99, {MAXPOLL}')
e('s_cbranch_scc1 L_C1_RETRY')
lab('L_C1_OK')
H = S
e(f'v_lshlrev_b32 v{H}, 16, v{T}')
e(f'v_and_b32 v{H+1}, 0xffff0000, v{T}')
e(f'v_lshlrev_b32 v{H+2}, 16, v{T+1}')
e(f'v_and_b32 v{H+3}, 0xffff0000, v{T+1}')
for j in range(4):
    bf16_round(AP+j, T+2)
    e(f'v_add_f32 v{H+j}, v{H+j}, v{AP+j}')
    bf16_round(H+j, T+2)
e(f'ds_write_b128 v{a_}, v[{H}:{H+3}] offset:{HB}')
mean, var, tq, rcp = T+3, T+4, T+5, T+6
e(f'v_add_f32 v{mean}, v{H}, v{H+1}')
e(f'v_add_f32 v{tq}, v{H+2}, v{H+3}')
e(f'v_add_f32 v{mean}, v{mean}, v{tq}')
wave_allreduce_sum(mean, tq)
e(f'v_lshlrev_b32 v{c_}, 2, v{WAVE}')
e(f'ds_write_b32 v{c_}, v{mean} offset:{WS1}')
e('s_waitcnt lgkmcnt(0)')
lab('L_C1_SKIP')
e('s_barrier')
e('s_cmp_lt_u32 s14, 4')
e('s_cbranch_scc1 L_C2_SKIP')
e(f'v_and_b32 v{part_}, 6, v{WAVE}')
e(f'v_lshlrev_b32 v{part_}, 2, v{part_}')
e(f'ds_read_b64 v[{P}:{P+1}], v{part_} offset:{WS1}')
e('s_waitcnt lgkmcnt(0)')
e(f'v_add_f32 v{mean}, v{P}, v{P+1}')
e(f'v_mul_f32 v{mean}, {INV512:#x}, v{mean}')
for j in range(4):
    e(f'v_sub_f32 v{H+4+j}, v{H+j}, v{mean}')
e(f'v_mul_f32 v{var}, v{H+4}, v{H+4}')
for j in range(1, 4):
    e(f'v_fmac_f32 v{var}, v{H+4+j}, v{H+4+j}')
e('s_nop 1')
wave_allreduce_sum(var, tq)
e(f'ds_write_b32 v{c_}, v{var} offset:{WS2}')
e('s_waitcnt lgkmcnt(0)')
lab('L_C2_SKIP')
e('s_barrier')
e('s_cmp_lt_u32 s14, 4')
e('s_cbranch_scc1 L_C3_SKIP')
e(f'ds_read_b64 v[{P}:{P+1}], v{part_} offset:{WS2}')
e('s_waitcnt lgkmcnt(0)')
e(f'v_add_f32 v{var}, v{P}, v{P+1}')
e(f'v_mul_f32 v{var}, {INV512:#x}, v{var}')
ln_finish(mean, var, tq, rcp)
for j in range(4):
    ln_elem(H+4+j, H+j, mean, var, rcp, tq, P+2, P+3)
e(f'ds_write_b128 v{a_}, v[{H+4}:{H+7}] offset:{HN}')
e('s_waitcnt lgkmcnt(0)')
lab('L_C3_SKIP')
e('s_barrier')
e('s_cmp_ge_u32 s14, 4')
e('s_cbranch_scc1 L_DONE')
e(f'v_lshrrev_b32 v{a_}, 1, v0')
e(f'v_lshlrev_b32 v{a_}, 2, v{a_}')
for b in range(2):
    for i in range(4):
        e(f'ds_read_b32 v{XS+b*4+i}, v{a_} offset:{HN+b*2048+i*512}')
e('s_waitcnt lgkmcnt(0)')
for i in range(4):
    unpack8(WGUr+4*i, T)
    for b in range(2):
        for j in range(4):
            pk_bc('mul' if i == 0 else 'fma', A+b*8+2*j, T+2*j, XS+b*4+i)
reduce_scatter16(A, (8, 4, 2))
e(f'v_lshlrev_b32 v{a_}, 7, v{WAVE}')
e(f'v_and_b32 v{c_}, 1, v0')
e(f'v_lshl_add_u32 v{a_}, v{c_}, 6, v{a_}')
e(f'v_and_b32 v{c_}, 48, v0')
e(f'v_add_u32 v{a_}, v{a_}, v{c_}')
e(f'ds_write_b128 v{a_}, v[{A}:{A+3}] offset:{REDC}')
e('s_waitcnt lgkmcnt(0)')
e('s_barrier')
e('s_cmp_lg_u32 s14, 0')
e('s_cbranch_scc1 L_C4_SKIP')
e('s_mov_b64 exec, 0xffff')
e(f'v_lshlrev_b32 v{a_}, 2, v0')
for w in range(4):
    e(f'ds_read_b32 v{A+w}, v{a_} offset:{REDC+w*128}')
    e(f'ds_read_b32 v{A+4+w}, v{a_} offset:{REDC+w*128+64}')
e('s_waitcnt lgkmcnt(0)')
for w in range(1, 4):
    e(f'v_add_f32 v{A}, v{A}, v{A+w}')
    e(f'v_add_f32 v{A+4}, v{A+4}, v{A+4+w}')
bf16_round(A, T)
bf16_round(A+4, T)
e(f'v_mul_f32 v{T+1}, s98, v{A}')
e(f'v_exp_f32 v{T+1}, -v{T+1}')
e('s_nop 0')
e(f'v_add_f32 v{T+1}, 1.0, v{T+1}')
e(f'v_rcp_f32 v{T+2}, v{T+1}')
e('s_nop 0')
e(f'v_mul_f32 v{T+3}, v{A}, v{T+2}')
e(f'v_fma_f32 v{T+4}, -v{T+3}, v{T+1}, v{A}')
e(f'v_fma_f32 v{T+3}, v{T+4}, v{T+2}, v{T+3}')
bf16_round(T+3, T)
e(f'v_mul_f32 v{T+3}, v{T+3}, v{A+4}')
bf16_round(T+3, T)
e(f'v_lshrrev_b32 v{a_}, 3, v0')
e(f'v_and_b32 v{c_}, 7, v0')
e(f'v_lshlrev_b32 v{a_}, 13, v{a_}')
e(f'v_lshl_add_u32 v{a_}, v{c_}, 2, v{a_}')
e('s_lshl_b32 s93, s12, 5')
e(f's_add_u32 s93, s93, {GU_BUF}')
e(f'buffer_store_dword v{T+3}, v{a_}, s[{SWS}:{SWS+3}], s93 offen sc1')
e('s_mov_b64 exec, -1')
stamp()
lab('L_C4_SKIP')
e('s_cmp_ge_u32 s11, 8')
e('s_cbranch_scc1 L_DONE')
e(f'v_lshlrev_b32 v{a_}, 2, v0')
G = 48
e('s_mov_b32 s99, 0')
lab('L_D_RETRY')
for b in range(2):
    for i in range(7):
        e(f's_mov_b32 s93, {GU_BUF + b*8192 + i*1024}')
        e(f'buffer_load_dword v{G+b*7+i}, v{a_}, s[{SWS}:{SWS+3}], s93 offen sc1')
e('s_waitcnt vmcnt(0)')
e(f'v_add_f32 v{T}, v{G}, v{G+1}')
e(f'v_add_f32 v{T+1}, v{G+2}, v{G+3}')
for i in range(4, 14, 2):
    e(f'v_add_f32 v{T}, v{T}, v{G+i}')
    e(f'v_add_f32 v{T+1}, v{T+1}, v{G+i+1}')
e(f'v_cmp_u_f32 vcc, v{T}, v{T+1}')
e('s_cbranch_vccz L_D_OK')
e('s_add_u32 s99, s99, 1')
e(f's_cmp_lt_u32 s99, {MAXPOLL}')
e('s_cbranch_scc1 L_D_RETRY')
lab('L_D_OK')
stamp()
for i in range(7):
    unpack8(WDr+4*i, T)
    for b in range(2):
        for j in range(4):
            pk_bc('mul' if i == 0 else 'fma', A+b*8+2*j, T+2*j, G+b*7+i)
reduce_scatter16(A, (8, 4, 2, 1))
e(f'v_lshlrev_b32 v{a_}, 6, v{WAVE}')
e(f'v_and_b32 v{c_}, 48, v0')
e(f'v_add_u32 v{a_}, v{a_}, v{c_}')
e(f'ds_write_b128 v{a_}, v[{A}:{A+3}] offset:{REDD}')
e('s_waitcnt lgkmcnt(0)')
e('s_barrier')
e('s_cmp_lg_u32 s14, 0')
e('s_cbranch_scc1 L_DONE')
e('s_mov_b64 exec, 0xffff')
e(f'v_lshlrev_b32 v{a_}, 2, v0')
for w in range(4):
    e(f'ds_read_b32 v{A+w}, v{a_} offset:{REDD+w*64}')
e(f'v_lshrrev_b32 v{part_}, 3, v0')
e(f'v_and_b32 v{c_}, 7, v0')
e(f'v_lshlrev_b32 v{part_}, 9, v{part_}')
e(f'v_add_u32 v{part_}, v{part_}, v{c_}')
e('s_lshl_b32 s93, s13, 3')
e(f'v_add_u32 v{part_}, s93, v{part_}')
e(f'v_lshlrev_b32 v{VX}, 2, v{part_}')
e(f'ds_read_b32 v{T}, v{VX} offset:{HB}')
e('s_waitcnt lgkmcnt(0)')
for w in range(1, 4):
    e(f'v_add_f32 v{A}, v{A}, v{A+w}')
bf16_round(A, T+1)
e(f'v_add_f32 v{A}, v{A}, v{T}')
e(f'v_cvt_pk_bf16_f32 v{A}, v{A}, v{A}')
e(f'v_lshlrev_b32 v{VX}, 1, v{part_}')
e(f'buffer_store_short v{A}, v{VX}, s[{SOUT}:{SOUT+3}], 0 offen')
e('s_mov_b64 exec, -1')
stamp()
lab('L_DONE')
e('s_endpgm')

hdr = list(HDR)
hdr.append(f'; @launch grid=(256,1,1) block=(1024,1,1) lds={LDS_TOTAL}')
hdr.append('.amdgcn_target "amdgcn-amd-amdhsa--gfx950"')
txt = '\n'.join(hdr) + '\n' + '\n'.join(out) + '\n'
txt += f'''.section .rodata,"a"
.p2align 6
.amdhsa_kernel {NAME}
  .amdhsa_next_free_vgpr 128
  .amdhsa_next_free_sgpr 102
  .amdhsa_accum_offset 128
  .amdhsa_group_segment_fixed_size 0
  .amdhsa_kernarg_size 96
  .amdhsa_user_sgpr_count 2
  .amdhsa_user_sgpr_kernarg_segment_ptr 1
  .amdhsa_system_sgpr_workgroup_id_x 1
  .amdhsa_float_denorm_mode_32 3
.end_amdhsa_kernel
'''
open(sys.argv[1] if len(sys.argv) > 1 else 'sequential_preLN__mha_block_cached__swiglu_ffn__decode.s', 'w').write(txt)
```

```python
import struct, sys, os

HDR = open('sequential_preLN__mha_block_cached__swiglu_ffn__decode.s.ref').read().split('\n')
HDR = [l for l in HDR if l.startswith(';') and '@launch' not in l and 'Override' not in l and 'grid=ceil' not in l]
SLEEP = int(os.environ.get('SLEEP', '4'))
STAMP = int(os.environ.get('STAMP', '0'))
STAMP_BASE = 0xE0000
MAXPOLL = 0x40000

def f2u(x):
    return struct.unpack('<I', struct.pack('<f', x))[0]

L2E = f2u(1.4426950408889634)
SCALE = f2u(128 ** -0.5)
EPS = f2u(1e-5)
INV512 = f2u(1.0 / 512)

PART_O = 0
PART_ML = 0x40000
ATTN_PART = 0x80000
GU_BUF = 0xC0000
WS_SIZE = 0x100000
CNT_CLEAN = 128; CNT_HB = 0

out = []
def e(s):
    out.append('    ' + s)
def lab(s):
    out.append(s + ':')

def srd(d, base_lo, base_hi, nrec):
    e(f's_mov_b32 s{d}, {base_lo}')
    e(f's_and_b32 s{d+1}, {base_hi}, 0xffff')
    e(f's_mov_b32 s{d+2}, {nrec}')
    e(f's_mov_b32 s{d+3}, 0x00020000')

def bf16_round(v, tmp):
    e(f'v_cvt_pk_bf16_f32 v{tmp}, v{v}, v{v}')
    e(f'v_lshlrev_b32 v{v}, 16, v{tmp}')

def row_reduce(vals, rots=(8, 4, 2, 1), op='add'):
    for rot in rots:
        if len(vals) < 3:
            e('s_nop 1')
        for v in vals:
            e(f'v_{op}_f32_dpp v{v}, v{v}, v{v} row_ror:{rot} row_mask:0xf bank_mask:0xf')
    e('s_nop 1')

def cross_row_allreduce(vals, tmps):
    for ins in ('v_permlane16_swap_b32', 'v_permlane32_swap_b32'):
        for v, t in zip(vals, tmps):
            e(f'v_mov_b32 v{t}, v{v}')
        e('s_nop 1')
        for v, t in zip(vals, tmps):
            e(f'{ins} v{v}, v{t}')
        e('s_nop 1')
        for v, t in zip(vals, tmps):
            e(f'v_add_f32 v{v}, v{v}, v{t}')
        e('s_nop 1')

def unpack8(src, dst):
    for j in range(4):
        e(f'v_lshlrev_b32 v{dst+2*j}, 16, v{src+j}')
        e(f'v_and_b32 v{dst+2*j+1}, 0xffff0000, v{src+j}')

def pk_bc(op, acc, src, sc):
    if sc % 2 == 0:
        pair = f'v[{sc}:{sc+1}]'; sel = 0
    else:
        pair = f'v[{sc-1}:{sc}]'; sel = 1
    if op == 'fma':
        mods = 'op_sel_hi:[1,0,1]' if sel == 0 else 'op_sel:[0,1,0] op_sel_hi:[1,1,1]'
        e(f'v_pk_fma_f32 v[{acc}:{acc+1}], v[{src}:{src+1}], {pair}, v[{acc}:{acc+1}] {mods}')
    else:
        mods = 'op_sel_hi:[1,0]' if sel == 0 else 'op_sel:[0,1] op_sel_hi:[1,1]'
        e(f'v_pk_mul_f32 v[{acc}:{acc+1}], v[{src}:{src+1}], {pair} {mods}')

stamp_n = [0]
def stamp():
    if not STAMP: return
    i = stamp_n[0]; stamp_n[0] += 1
    if STAMP == 3 and i not in (0, 8): return
    e('s_cmp_lg_u32 s14, 0')
    e(f's_cbranch_scc1 L_ST_{i}')
    e('s_memrealtime s[4:5]')
    e('s_waitcnt lgkmcnt(0)')
    e('s_mov_b64 s[8:9], exec')
    e('s_mov_b64 exec, 1')
    if STAMP == 1:
        e('s_lshl_b32 s6, s2, 7')
        e(f's_add_u32 s6, s6, {STAMP_BASE + i*8}')
        e('v_mov_b32 v126, s4')
        e('v_mov_b32 v127, s5')
        e('v_mov_b32 v3, 0')
        e('buffer_store_dwordx2 v[126:127], v3, s[36:39], s6 offen')
    else:
        e('v_mov_b32 v126, s4')
        e(f'v_mov_b32 v3, {4*i}')
        e('buffer_atomic_umax v126, v3, s[40:43], 0 offen')
        if i == 0:
            e('s_not_b32 s4, s4')
            e('v_mov_b32 v127, s4')
            e('v_mov_b32 v3, 60')
            e('buffer_atomic_umax v127, v3, s[40:43], 0 offen')
    e('s_mov_b64 exec, s[8:9]')
    lab(f'L_ST_{i}')

NAME = 'sequential_preLN__mha_block_cached__swiglu_ffn__decode_kernel'
out.append('.text')
out.append(f'.globl {NAME}')
out.append('.p2align 8')
out.append(f'.type {NAME},@function')
lab(NAME)

XN = 0; QRED = 2048; QB = 10240; MB = 10496; LB = 10752; ACC = 11008; RED2 = 43776; LP = 47872
XO = 47936; REDB = 49984; HN = 54080; HB = 58176; WS1 = 62272; WS2 = 62336; REDC = 62400; REDD = 64448
LDS_TOTAL = 65472

LANE = 1; WAVE = 2; VX = 3
Q = 4; ACCV = 8; S = 16; P = 24; T = 32
VM = 40; VL = 41; VMN = 42; VAL = 44; VOFF = 46; VOFF2 = 47
WO = 48; WGU = 52; WD = 56
KR = 64; VR = 96
SK = 20; SV = 24; SX = 28; SWQ = 32; SWS = 36; SDBG = 40; SWO = 44; SG = 48; SU = 52; SD = 56; SOUT = 60
e('s_cmp_ge_u32 s2, 256')
e('s_cbranch_scc1 L_DONE')
e('s_load_dwordx16 s[64:79], s[0:1], 0')
e('s_load_dwordx8 s[80:87], s[0:1], 64')
e(f'v_and_b32 v{LANE}, 63, v0')
e(f'v_lshrrev_b32 v{WAVE}, 6, v0')
e('s_nop 0')
e(f'v_readfirstlane_b32 s14, v{WAVE}')
e('s_lshr_b32 s15, s2, 2')
e('s_lshr_b32 s16, s15, 5')
e('s_and_b32 s17, s15, 31')
e('s_and_b32 s10, s2, 7')
e('s_lshr_b32 s11, s2, 3')
e('s_and_b32 s90, s11, 1')
e('s_lshl_b32 s91, s10, 1')
e('s_add_u32 s90, s90, s91')
e('s_lshr_b32 s91, s11, 1')
e('s_mul_i32 s12, s10, 28')
e('s_add_u32 s12, s12, s11')
e('s_lshl_b32 s13, s10, 3')
e('s_add_u32 s13, s13, s11')
e('s_waitcnt lgkmcnt(0)')
e('s_lshl_b32 s18, s2, 20')
e('s_lshr_b32 s19, s2, 12')
e('s_add_u32 s88, s66, s18')
e('s_addc_u32 s89, s67, s19')
srd(SK, 's88', 's89', 0x100000)
e('s_add_u32 s88, s68, s18')
e('s_addc_u32 s89, s69, s19')
srd(SV, 's88', 's89', 0x100000)
e('s_lshl_b32 s18, s16, 10')
e('s_add_u32 s88, s64, s18')
e('s_addc_u32 s89, s65, 0')
srd(SX, 's88', 's89', 1024)
e('s_lshl_b32 s18, s17, 8')
e('s_add_u32 s88, s70, s18')
e('s_addc_u32 s89, s71, 0')
e('s_sub_u32 s19, 0x400000, s18')
srd(SWQ, 's88', 's89', 's19')
srd(SWS, 's86', 's87', WS_SIZE)
srd(SDBG, 's84', 's85', 256)
e('s_lshl_b32 s18, s91, 18')
e('s_lshl_b32 s19, s90, 6')
e('s_add_u32 s18, s18, s19')
e('s_add_u32 s88, s72, s18')
e('s_addc_u32 s89, s73, 0')
e('s_sub_u32 s19, 0x400000, s18')
srd(SWO, 's88', 's89', 's19')
e('s_lshl_b32 s18, s12, 4')
e(f's_sub_u32 s19, {512*3584}, s18')
e('s_cmp_lt_u32 s11, 28')
e('s_cselect_b32 s19, s19, 0')
e('s_cselect_b32 s18, s18, 0')
e('s_add_u32 s88, s76, s18')
e('s_addc_u32 s89, s77, 0')
srd(SG, 's88', 's89', 's19')
e('s_add_u32 s88, s78, s18')
e('s_addc_u32 s89, s79, 0')
srd(SU, 's88', 's89', 's19')
e('s_lshl_b32 s18, s13, 4')
e(f's_sub_u32 s19, {1792*1024}, s18')
e('s_cmp_lt_u32 s11, 8')
e('s_cselect_b32 s19, s19, 0')
e('s_cselect_b32 s18, s18, 0')
e('s_add_u32 s88, s80, s18')
e('s_addc_u32 s89, s81, 0')
srd(SD, 's88', 's89', 's19')
srd(SOUT, 's82', 's83', 2048)
stamp()

e('s_cmp_ge_u32 s14, 2')
e('s_cbranch_scc1 L_CLEAN_SKIP')
e(f'v_mov_b32 v{T}, -1')
e(f'v_mov_b32 v{T+1}, -1')
e(f'v_lshlrev_b32 v{VX}, 2, v0')
e('s_lshl_b32 s93, s2, 9')
e(f'buffer_store_dword v{T}, v{VX}, s[{SWS}:{SWS+3}], s93 offen offset:{PART_O} sc1')
e('s_cmp_lg_u32 s14, 0')
e('s_cbranch_scc1 L_CLEAN_SKIP')
e(f'v_lshrrev_b32 v{VX}, 5, v0')
e(f'v_and_b32 v{T+2}, 31, v0')
e(f'v_lshlrev_b32 v{VX}, 11, v{VX}')
e(f'v_lshl_add_u32 v{VX}, v{T+2}, 2, v{VX}')
e('s_lshl_b32 s93, s91, 12')
e('s_lshl_b32 s92, s90, 7')
e('s_add_u32 s93, s93, s92')
e(f's_add_u32 s93, s93, {ATTN_PART}')
e(f'buffer_store_dword v{T}, v{VX}, s[{SWS}:{SWS+3}], s93 offen sc1')
e('s_mov_b64 exec, 0xffff')
e(f'v_lshrrev_b32 v{VX}, 3, v0')
e(f'v_and_b32 v{T+2}, 7, v0')
e(f'v_lshlrev_b32 v{VX}, 13, v{VX}')
e(f'v_lshl_add_u32 v{VX}, v{T+2}, 2, v{VX}')
e('s_lshl_b32 s93, s12, 5')
e(f's_add_u32 s93, s93, {GU_BUF}')
e('s_cmp_ge_u32 s11, 28')
e('s_cbranch_scc1 L_CLEAN_NOGU')
e(f'buffer_store_dword v{T}, v{VX}, s[{SWS}:{SWS+3}], s93 offen sc1')
lab('L_CLEAN_NOGU')
e('s_mov_b64 exec, 1')
e(f'v_mov_b32 v{VX}, 0')
e('s_lshl_b32 s93, s2, 3')
e(f's_add_u32 s93, s93, {PART_ML}')
e(f'buffer_store_dwordx2 v[{T}:{T+1}], v{VX}, s[{SWS}:{SWS+3}], s93 offen sc1')
e('s_mov_b64 exec, -1')
e('s_nop 1')
lab('L_CLEAN_SKIP')

e(f'v_lshlrev_b32 v{VX}, 4, v{LANE}')
e(f'buffer_load_dwordx4 v[{T}:{T+3}], v{VX}, s[{SX}:{SX+3}], 0 offen')
e(f'v_lshrrev_b32 v{VX}, 4, v0')
e(f'v_lshlrev_b32 v{VX}, 13, v{VX}')
e(f'v_and_b32 v{VM}, 15, v0')
e(f'v_lshl_add_u32 v{VX}, v{VM}, 4, v{VX}')
for i in range(8):
    e(f's_mov_b32 s93, {i*524288}')
    e(f'buffer_load_dwordx4 v[{VR+4*i}:{VR+4*i+3}], v{VX}, s[{SWQ}:{SWQ+3}], s93 offen')
e(f'v_lshlrev_b32 v{VOFF}, 13, v{WAVE}')
e(f'v_lshl_add_u32 v{VOFF}, v{LANE}, 4, v{VOFF}')
e(f'v_add_u32 v{VOFF2}, 4096, v{VOFF}')
e('s_mov_b32 s94, 0')
def kv_loads(R, srdb, soff):
    for i in range(8):
        vo = VOFF if i < 4 else VOFF2
        e(f'buffer_load_dwordx4 v[{R+4*i}:{R+4*i+3}], v{vo}, s[{srdb}:{srdb+3}], {soff} offen offset:{(i%4)*1024} nt')
kv_loads(KR, SK, 's94')

e('s_waitcnt vmcnt(16)')
X = S; D = P
t0, t1, t2, t3, t4, t5 = 40, 41, 42, 43, 44, 45
unpack8(T, X)
e(f'v_add_f32 v{t0}, v{X}, v{X+1}')
for j in range(2, 8):
    e(f'v_add_f32 v{t0}, v{t0}, v{X+j}')
def wave_allreduce_sum(v, t):
    row_reduce([v])
    cross_row_allreduce([v], [t])
def ln_finish(mean, var, tmp, rcp):
    bf16_round(var, tmp)
    bf16_round(mean, tmp)
    e(f'v_add_f32 v{var}, {EPS:#x}, v{var}')
    bf16_round(var, tmp)
    e(f'v_sqrt_f32 v{var}, v{var}')
    e('s_nop 0')
    bf16_round(var, tmp)
    e(f'v_rcp_f32 v{rcp}, v{var}')
    e('s_nop 0')
def ln_elem(dst, src, mean, den, rcp, ta, tb, tc):
    e(f'v_sub_f32 v{dst}, v{src}, v{mean}')
    bf16_round(dst, ta)
    e(f'v_mul_f32 v{tb}, v{dst}, v{rcp}')
    e(f'v_fma_f32 v{tc}, -v{tb}, v{den}, v{dst}')
    e(f'v_fma_f32 v{dst}, v{tc}, v{rcp}, v{tb}')
    bf16_round(dst, ta)
wave_allreduce_sum(t0, t1)
e(f'v_mul_f32 v{t0}, {INV512:#x}, v{t0}')
for j in range(8):
    e(f'v_sub_f32 v{D+j}, v{X+j}, v{t0}')
e(f'v_mul_f32 v{t2}, v{D}, v{D}')
for j in range(1, 8):
    e(f'v_fmac_f32 v{t2}, v{D+j}, v{D+j}')
e('s_nop 1')
wave_allreduce_sum(t2, t1)
e(f'v_mul_f32 v{t2}, {INV512:#x}, v{t2}')
ln_finish(t0, t2, t1, t3)
for j in range(8):
    ln_elem(D+j, X+j, t0, t2, t3, t1, t4, t5)
e(f'v_lshlrev_b32 v{VX}, 5, v{LANE}')
e(f'ds_write_b128 v{VX}, v[{D}:{D+3}] offset:{XN}')
e(f'ds_write_b128 v{VX}, v[{D+4}:{D+7}] offset:{XN+16}')
e('s_waitcnt lgkmcnt(0)')
e('s_barrier')
e('s_cmp_lg_u32 s14, 0')
e('s_cbranch_scc1 L_CS_SKIP')
e('s_mov_b64 exec, 1')
e(f'v_mov_b32 v{VX}, {CNT_CLEAN}')
e(f'v_mov_b32 v{t0}, 1')
e(f'buffer_atomic_add v{t0}, v{VX}, s[{SDBG}:{SDBG+3}], 0 offen')
e('s_mov_b64 exec, -1')
lab('L_CS_SKIP')
e(f'v_lshrrev_b32 v{VX}, 4, v0')
e(f'v_lshlrev_b32 v{VX}, 2, v{VX}')
for i in range(8):
    e(f'ds_read_b32 v{S+i}, v{VX} offset:{XN+i*256}')
e('s_waitcnt vmcnt(8) lgkmcnt(0)')
for i in range(8):
    unpack8(VR+4*i, T)
    for j in range(4):
        pk_bc('mul' if i == 0 else 'fma', ACCV+2*j, T+2*j, S+i)
kv_loads(VR, SV, 's94')
e('s_nop 1')
cross_row_allreduce([ACCV+j for j in range(8)], [T+j for j in range(8)])
e(f'v_lshlrev_b32 v{VX}, 9, v{WAVE}')
e(f'v_and_b32 v{t0}, 15, v0')
e(f'v_lshl_add_u32 v{VX}, v{t0}, 5, v{VX}')
e(f'ds_write_b128 v{VX}, v[{ACCV}:{ACCV+3}] offset:{QRED}')
e(f'ds_write_b128 v{VX}, v[{ACCV+4}:{ACCV+7}] offset:{QRED+16}')
e('s_waitcnt lgkmcnt(0)')
e('s_barrier')
e('s_cmp_ge_u32 s14, 2')
e('s_cbranch_scc1 L_QSKIP')
e(f'v_lshlrev_b32 v{VX}, 2, v0')
for w in range(16):
    e(f'ds_read_b32 v{S+w}, v{VX} offset:{QRED+w*512}')
e('s_waitcnt lgkmcnt(0)')
for w in range(1, 16):
    e(f'v_add_f32 v{S}, v{S}, v{S+w}')
e(f'v_cvt_pk_bf16_f32 v{S}, v{S}, v{S}')
e(f'v_lshlrev_b32 v{VX}, 1, v0')
e(f'ds_write_b16 v{VX}, v{S} offset:{QB}')
e('s_waitcnt lgkmcnt(0)')
lab('L_QSKIP')
e('s_barrier')
e(f'v_and_b32 v{VX}, 15, v0')
e(f'v_lshlrev_b32 v{VX}, 4, v{VX}')
e(f'ds_read_b128 v[{Q}:{Q+3}], v{VX} offset:{QB}')
e(f'v_mov_b32 v{VM}, 0xff800000')
e(f'v_mov_b32 v{VL}, 0')
for j in range(8):
    e(f'v_mov_b32 v{ACCV+j}, 0')
e(f's_mov_b32 s96, {SCALE:#x}')
e(f's_mov_b32 s97, {SCALE:#x}')
e(f's_mov_b32 s98, {L2E:#x}')
e('s_waitcnt lgkmcnt(0)')
lab('L_LOOP')
e('s_add_u32 s95, s94, 0x20000')
e('s_waitcnt vmcnt(8)')
for j in range(4):
    for i in range(8):
        src2 = '0' if j == 0 else f'v{S+i}'
        e(f'v_dot2_f32_bf16 v{S+i}, v{KR+4*i+j}, v{Q+j}, {src2}')
kv_loads(KR, SK, 's95')
row_reduce([S+i for i in range(8)])
for i in range(0, 8, 2):
    e(f'v_cvt_pk_bf16_f32 v{T+i}, v{S+i}, v{S+i+1}')
for i in range(0, 8, 2):
    e(f'v_lshlrev_b32 v{S+i}, 16, v{T+i}')
    e(f'v_and_b32 v{S+i+1}, 0xffff0000, v{T+i}')
for i in range(0, 8, 2):
    e(f'v_pk_mul_f32 v[{S+i}:{S+i+1}], v[{S+i}:{S+i+1}], s[96:97]')
for i in range(0, 8, 2):
    e(f'v_cvt_pk_bf16_f32 v{T+i}, v{S+i}, v{S+i+1}')
for i in range(0, 8, 2):
    e(f'v_lshlrev_b32 v{S+i}, 16, v{T+i}')
    e(f'v_and_b32 v{S+i+1}, 0xffff0000, v{T+i}')
e(f'v_max3_f32 v{VMN}, v{S}, v{S+1}, v{VM}')
e(f'v_max3_f32 v{T}, v{S+2}, v{S+3}, v{S+4}')
e(f'v_max3_f32 v{T+1}, v{S+5}, v{S+6}, v{S+7}')
e(f'v_max3_f32 v{VMN}, v{VMN}, v{T}, v{T+1}')
e(f'v_mul_f32 v{T+2}, s98, v{VMN}')
e(f'v_fma_f32 v{VAL}, v{VM}, s98, -v{T+2}')
e(f'v_exp_f32 v{VAL}, v{VAL}')
for i in range(8):
    e(f'v_fma_f32 v{P+i}, v{S+i}, s98, -v{T+2}')
for i in range(8):
    e(f'v_exp_f32 v{P+i}, v{P+i}')
e(f'v_mov_b32 v{VAL+1}, v{VAL}')
e(f'v_mov_b32 v{VM}, v{VMN}')
e(f'v_mul_f32 v{VL}, v{VL}, v{VAL}')
for j in range(4):
    e(f'v_pk_mul_f32 v[{ACCV+2*j}:{ACCV+2*j+1}], v[{ACCV+2*j}:{ACCV+2*j+1}], v[{VAL}:{VAL+1}]')
for i in range(8):
    e(f'v_add_f32 v{VL}, v{VL}, v{P+i}')
e('s_waitcnt vmcnt(8)')
for i in range(8):
    unpack8(VR+4*i, T)
    for j in range(4):
        pk_bc('fma', ACCV+2*j, T+2*j, P+i)
kv_loads(VR, SV, 's95')
e('s_mov_b32 s94, s95')
e('s_cmp_lt_u32 s94, 0x100000')
e('s_cbranch_scc1 L_LOOP')

PF = int(os.environ.get('PF', '1'))
if PF:
    e('s_cmp_lg_u32 s14, 8')
    e('s_cbranch_scc1 L_PF_SKIP')
    e('s_getpc_b64 s[92:93]')
    lab('L_PF_HERE')
    e('s_add_u32 s92, s92, L_PF_SKIP-L_PF_HERE')
    e('s_addc_u32 s93, s93, 0')
    e(f'v_lshlrev_b32 v{VX}, 6, v{LANE}')
    for i in range(2):
        e(f'global_load_dword v{T+i}, v{VX}, s[92:93]')
        e(f'v_add_u32 v{VX}, 4096, v{VX}')
    lab('L_PF_SKIP')
WOr = 64; WGUr = 80; WDr = 96
c_, part_, a_ = 40, 41, 44
TID4 = 45
e('s_cmp_ge_u32 s14, 4')
e('s_cbranch_scc1 L_WLOAD_SKIP')
e(f'v_lshrrev_b32 v{VX}, 2, v0')
e(f'v_lshlrev_b32 v{VX}, 10, v{VX}')
e(f'v_and_b32 v{T}, 3, v0')
e(f'v_lshl_add_u32 v{VX}, v{T}, 4, v{VX}')
for i in range(4):
    e(f's_mov_b32 s93, {i*65536}')
    e(f'buffer_load_dwordx4 v[{WOr+4*i}:{WOr+4*i+3}], v{VX}, s[{SWO}:{SWO+3}], s93 offen')
e(f'v_lshrrev_b32 v{VX}, 1, v0')
e('s_movk_i32 s93, 3584')
e(f'v_mul_lo_u32 v{VX}, v{VX}, s93')
e('s_mov_b32 s92, 0x55555555')
e('s_mov_b32 s93, 0x55555555')
e('s_mov_b64 exec, s[92:93]')
for i in range(4):
    e(f's_mov_b32 s99, {i*128*3584}')
    e(f'buffer_load_dwordx4 v[{WGUr+4*i}:{WGUr+4*i+3}], v{VX}, s[{SG}:{SG+3}], s99 offen')
e('s_not_b64 exec, exec')
for i in range(4):
    e(f's_mov_b32 s99, {i*128*3584}')
    e(f'buffer_load_dwordx4 v[{WGUr+4*i}:{WGUr+4*i+3}], v{VX}, s[{SU}:{SU+3}], s99 offen')
e('s_mov_b64 exec, -1')
e(f'v_lshlrev_b32 v{VX}, 10, v0')
for i in range(7):
    e(f's_mov_b32 s93, {i*262144}')
    e(f'buffer_load_dwordx4 v[{WDr+4*i}:{WDr+4*i+3}], v{VX}, s[{SD}:{SD+3}], s93 offen')
lab('L_WLOAD_SKIP')
stamp()
e(f'v_lshrrev_b32 v{VX}, 4, v0')
e(f'v_lshlrev_b32 v{VAL}, 9, v{VX}')
e(f'v_and_b32 v{VAL+1}, 15, v0')
e(f'v_lshl_add_u32 v{VAL}, v{VAL+1}, 5, v{VAL}')
e(f'ds_write_b128 v{VAL}, v[{ACCV}:{ACCV+3}] offset:{ACC}')
e(f'ds_write_b128 v{VAL}, v[{ACCV+4}:{ACCV+7}] offset:{ACC+16}')
e(f'v_lshlrev_b32 v{VX}, 2, v{VX}')
e(f'ds_write_b32 v{VX}, v{VM} offset:{MB}')
e(f'ds_write_b32 v{VX}, v{VL} offset:{LB}')
e('s_waitcnt lgkmcnt(0)')
e('s_barrier')
e(f'v_lshlrev_b32 v{VX}, 4, v{VAL+1}')
e(f'ds_read_b128 v[{ACCV}:{ACCV+3}], v{VX} offset:{MB}')
e(f'v_and_b32 v{c_}, 127, v0')
e(f'v_lshrrev_b32 v{part_}, 7, v0')
e(f'v_lshlrev_b32 v{a_}, 5, v{part_}')
e(f'ds_read_b128 v[{S}:{S+3}], v{a_} offset:{MB}')
e(f'ds_read_b128 v[{S+4}:{S+7}], v{a_} offset:{MB+16}')
e(f'ds_read_b128 v[{P}:{P+3}], v{a_} offset:{LB}')
e(f'ds_read_b128 v[{P+4}:{P+7}], v{a_} offset:{LB+16}')
e(f'v_lshlrev_b32 v{a_}, 12, v{part_}')
e(f'v_lshl_add_u32 v{a_}, v{c_}, 2, v{a_}')
for j in range(8):
    e(f'ds_read_b32 v{T+j}, v{a_} offset:{ACC+j*512}')
e('s_waitcnt lgkmcnt(0)')
e(f'v_max3_f32 v{VMN}, v{ACCV}, v{ACCV+1}, v{ACCV+2}')
e(f'v_max_f32 v{VMN}, v{VMN}, v{ACCV+3}')
row_reduce([VMN], op='max')
e(f'v_mul_f32 v{ACCV}, s98, v{VMN}')
for j in range(8):
    e(f'v_fma_f32 v{S+j}, v{S+j}, s98, -v{ACCV}')
for j in range(8):
    e(f'v_exp_f32 v{S+j}, v{S+j}')
e('s_nop 0')
e(f'v_mul_f32 v{ACCV+1}, v{S}, v{T}')
e(f'v_mul_f32 v{ACCV+2}, v{S}, v{P}')
for j in range(1, 8):
    e(f'v_fmac_f32 v{ACCV+1}, v{S+j}, v{T+j}')
    e(f'v_fmac_f32 v{ACCV+2}, v{S+j}, v{P+j}')
e(f'v_lshlrev_b32 v{a_}, 9, v{part_}')
e(f'v_lshl_add_u32 v{a_}, v{c_}, 2, v{a_}')
e(f'ds_write_b32 v{a_}, v{ACCV+1} offset:{RED2}')
e(f'v_lshlrev_b32 v{a_}, 2, v{part_}')
e(f'ds_write_b32 v{a_}, v{ACCV+2} offset:{LP}')
e('s_waitcnt lgkmcnt(0)')
e('s_barrier')
e('s_cmp_ge_u32 s14, 8')
e('s_cbranch_scc1 L_DONE')
e(f'v_and_b32 v{TID4}, 255, v0')
e('s_cmp_ge_u32 s14, 2')
e('s_cbranch_scc1 L_APUB_SKIP')
e(f'v_lshlrev_b32 v{a_}, 2, v0')
for j in range(8):
    e(f'ds_read_b32 v{T+j}, v{a_} offset:{RED2+j*512}')
e(f'v_mov_b32 v{VX}, 0')
e(f'ds_read_b128 v[{P}:{P+3}], v{VX} offset:{LP}')
e(f'ds_read_b128 v[{P+4}:{P+7}], v{VX} offset:{LP+16}')
e('s_waitcnt lgkmcnt(0)')
for j in range(1, 8):
    e(f'v_add_f32 v{T}, v{T}, v{T+j}')
    e(f'v_add_f32 v{P}, v{P}, v{P+j}')
e('s_lshl_b32 s93, s2, 9')
e(f'buffer_store_dword v{T}, v{a_}, s[{SWS}:{SWS+3}], s93 offen offset:{PART_O} sc1')
e(f'v_mov_b32 v{VMN+1}, v{P}')
e('s_cmp_lg_u32 s14, 0')
e('s_cbranch_scc1 L_APUB_SKIP')
e('s_lshl_b32 s93, s2, 3')
e(f's_add_u32 s93, s93, {PART_ML}')
e('s_mov_b64 exec, 1')
e(f'buffer_store_dwordx2 v[{VMN}:{VMN+1}], v{VX}, s[{SWS}:{SWS+3}], s93 offen sc1')
e('s_mov_b64 exec, -1')
stamp()
lab('L_APUB_SKIP')
e('s_cmp_lg_u32 s14, 4')
e('s_cbranch_scc1 L_P1_SKIP')
e(f'v_mov_b32 v{VX}, {CNT_CLEAN}')
e('s_mov_b32 s92, 0')
lab('L_PCLEAN')
e(f'buffer_load_dword v{VAL}, v{VX}, s[{SDBG}:{SDBG+3}], 0 offen sc1')
e('s_waitcnt vmcnt(0)')
e(f'v_readfirstlane_b32 s93, v{VAL}')
e('s_cmp_ge_u32 s93, 256')
e('s_cbranch_scc1 L_PCLEAN_D')
e(f's_sleep {SLEEP}')
e('s_add_u32 s92, s92, 1')
e(f's_cmp_lt_u32 s92, {MAXPOLL}')
e('s_cbranch_scc1 L_PCLEAN')
lab('L_PCLEAN_D')
e('s_mov_b64 exec, 0xffff')
e(f'v_lshrrev_b32 v{VX}, 3, v{LANE}')
e(f'v_and_b32 v{c_}, 7, v{LANE}')
e(f'v_lshlrev_b32 v{VX}, 10, v{VX}')
e(f'v_lshl_add_u32 v{VX}, v{c_}, 3, v{VX}')
e('s_lshl_b32 s93, s91, 6')
e(f's_add_u32 s93, s93, {PART_ML}')
e('s_mov_b32 s92, 0')
lab('L_PML')
e(f'buffer_load_dwordx2 v[{VAL}:{VAL+1}], v{VX}, s[{SWS}:{SWS+3}], s93 offen sc1')
e('s_waitcnt vmcnt(0)')
e(f'v_cmp_u_f32 vcc, v{VAL}, v{VAL+1}')
e('s_cbranch_vccz L_PML_D')
e(f's_sleep {SLEEP}')
e('s_add_u32 s92, s92, 1')
e(f's_cmp_lt_u32 s92, {MAXPOLL}')
e('s_cbranch_scc1 L_PML')
lab('L_PML_D')
e('s_mov_b64 exec, -1')
e(f'v_and_b32 v{TID4}, 255, v0')
lab('L_P1_SKIP')
e('s_barrier')
stamp()
e('s_cmp_lt_u32 s14, 4')
e('s_cbranch_scc1 L_B1_SKIP')
O = S
ML = KR
e(f'v_lshrrev_b32 v{part_}, 7, v{TID4}')
e(f'v_and_b32 v{c_}, 127, v{TID4}')
e(f'v_lshlrev_b32 v{a_}, 11, v{part_}')
e(f'v_lshl_add_u32 v{a_}, v{c_}, 2, v{a_}')
e(f'v_lshlrev_b32 v{VX}, 5, v{part_}')
e('s_mov_b32 s99, 0')
lab('L_B1_RETRY')
for b in range(2):
    e('s_lshl_b32 s93, s91, 12')
    e(f's_add_u32 s93, s93, {PART_O + b*65536}')
    for s_ in range(4):
        e(f'buffer_load_dword v{O+b*4+s_}, v{a_}, s[{SWS}:{SWS+3}], s93 offen offset:{s_*512} sc1')
    e('s_lshl_b32 s92, s91, 6')
    e(f's_add_u32 s92, s92, {PART_ML + b*1024}')
    e(f'buffer_load_dwordx4 v[{ML+b*8}:{ML+b*8+3}], v{VX}, s[{SWS}:{SWS+3}], s92 offen sc1')
    e(f'buffer_load_dwordx4 v[{ML+b*8+4}:{ML+b*8+7}], v{VX}, s[{SWS}:{SWS+3}], s92 offen offset:16 sc1')
e('s_waitcnt vmcnt(0)')
XR = [VOFF, VOFF2]
for b in range(2):
    m = [ML+b*8+2*s_ for s_ in range(4)]
    l = [ML+b*8+2*s_+1 for s_ in range(4)]
    e(f'v_max3_f32 v{T}, v{m[0]}, v{m[1]}, v{m[2]}')
    e(f'v_max_f32 v{T}, v{T}, v{m[3]}')
    e(f'v_mul_f32 v{T+1}, s98, v{T}')
    for s_ in range(4):
        e(f'v_fma_f32 v{m[s_]}, v{m[s_]}, s98, -v{T+1}')
    for s_ in range(4):
        e(f'v_exp_f32 v{m[s_]}, v{m[s_]}')
    e('s_nop 0')
    e(f'v_mul_f32 v{T+2}, v{m[0]}, v{l[0]}')
    e(f'v_mul_f32 v{T+3}, v{m[0]}, v{O+b*4}')
    for s_ in range(1, 4):
        e(f'v_fmac_f32 v{T+2}, v{m[s_]}, v{l[s_]}')
        e(f'v_fmac_f32 v{T+3}, v{m[s_]}, v{O+b*4+s_}')
    e(f'v_rcp_f32 v{T+4}, v{T+2}')
    e('s_nop 0')
    e(f'v_mul_f32 v{T+5}, v{T+3}, v{T+4}')
    e(f'v_fma_f32 v{T+6}, -v{T+5}, v{T+2}, v{T+3}')
    e(f'v_fma_f32 v{XR[b]}, v{T+6}, v{T+4}, v{T+5}')
e(f'v_cmp_u_f32 vcc, v{XR[0]}, v{XR[1]}')
e('s_cbranch_vccz L_B1_OK')
e('s_add_u32 s99, s99, 1')
e(f's_cmp_lt_u32 s99, {MAXPOLL}')
e('s_cbranch_scc1 L_B1_RETRY')
lab('L_B1_OK')
e(f'v_lshlrev_b32 v{a_}, 2, v{TID4}')
for b in range(2):
    bf16_round(XR[b], T+6)
    e(f'ds_write_b32 v{a_}, v{XR[b]} offset:{XO+b*1024}')
e('s_waitcnt lgkmcnt(0)')
lab('L_B1_SKIP')
e('s_barrier')

def reduce_scatter16(A, rots):
    e('s_nop 1')
    for i in range(8):
        e(f'v_permlane32_swap_b32 v{A+i}, v{A+i+8}')
    e('s_nop 1')
    for i in range(8):
        e(f'v_add_f32 v{A+i}, v{A+i}, v{A+i+8}')
    e('s_nop 1')
    for i in range(4):
        e(f'v_permlane16_swap_b32 v{A+i}, v{A+i+4}')
    e('s_nop 1')
    for i in range(4):
        e(f'v_add_f32 v{A+i}, v{A+i}, v{A+i+4}')
    e('s_nop 1')
    for rot in rots:
        for i in range(4):
            e(f'v_add_f32_dpp v{A+i}, v{A+i}, v{A+i} row_ror:{rot} row_mask:0xf bank_mask:0xf')
    e('s_nop 1')

A = S
XS = 48
e('s_cmp_ge_u32 s14, 4')
e('s_cbranch_scc1 L_B2_SKIP')
e(f'v_and_b32 v{a_}, 0xfc, v0')
for b in range(2):
    for i in range(4):
        e(f'ds_read_b32 v{XS+b*4+i}, v{a_} offset:{XO+b*1024+i*256}')
e('s_waitcnt vmcnt(0) lgkmcnt(0)')
for i in range(4):
    unpack8(WOr+4*i, T)
    for b in range(2):
        for j in range(4):
            pk_bc('mul' if i == 0 else 'fma', A+b*8+2*j, T+2*j, XS+b*4+i)
reduce_scatter16(A, (8, 4))
e(f'v_lshlrev_b32 v{a_}, 8, v{WAVE}')
e(f'v_and_b32 v{c_}, 3, v0')
e(f'v_lshl_add_u32 v{a_}, v{c_}, 5, v{a_}')
e(f'v_and_b32 v{c_}, 32, v0')
e(f'v_lshl_add_u32 v{a_}, v{c_}, 2, v{a_}')
e(f'v_and_b32 v{c_}, 16, v0')
e(f'v_add_u32 v{a_}, v{a_}, v{c_}')
e(f'ds_write_b128 v{a_}, v[{A}:{A+3}] offset:{REDB}')
e('s_waitcnt lgkmcnt(0)')
lab('L_B2_SKIP')
e('s_barrier')
e('s_cmp_lg_u32 s14, 0')
e('s_cbranch_scc1 L_B3_SKIP')
e(f'v_lshlrev_b32 v{a_}, 2, v0')
for w in range(4):
    e(f'ds_read_b32 v{T+w}, v{a_} offset:{REDB+w*256}')
e('s_waitcnt lgkmcnt(0)')
e(f'v_add_f32 v{T}, v{T}, v{T+1}')
e(f'v_add_f32 v{T+2}, v{T+2}, v{T+3}')
e(f'v_add_f32 v{T}, v{T}, v{T+2}')
e(f'v_lshrrev_b32 v{a_}, 5, v0')
e(f'v_and_b32 v{c_}, 31, v0')
e(f'v_lshlrev_b32 v{a_}, 11, v{a_}')
e(f'v_lshl_add_u32 v{a_}, v{c_}, 2, v{a_}')
e('s_lshl_b32 s93, s91, 12')
e('s_lshl_b32 s92, s90, 7')
e('s_add_u32 s93, s93, s92')
e(f's_add_u32 s93, s93, {ATTN_PART}')
e(f'buffer_store_dword v{T}, v{a_}, s[{SWS}:{SWS+3}], s93 offen sc1')
stamp()
lab('L_B3_SKIP')
e('s_cmp_ge_u32 s11, 28')
e('s_cbranch_scc1 L_DONE')
e('s_cmp_lg_u32 s14, 4')
e('s_cbranch_scc1 L_P2_SKIP')
e(f'v_lshlrev_b32 v{VX}, 5, v{LANE}')
e(f's_mov_b32 s93, {PART_ML}')
e('s_mov_b32 s92, 0')
lab('L_PMLA')
e(f'buffer_load_dwordx4 v[{KR}:{KR+3}], v{VX}, s[{SWS}:{SWS+3}], s93 offen sc1')
e(f'buffer_load_dwordx4 v[{KR+4}:{KR+7}], v{VX}, s[{SWS}:{SWS+3}], s93 offen offset:16 sc1')
e('s_waitcnt vmcnt(0)')
for j in range(1, 7):
    e(f'v_add_f32 v{KR}, v{KR}, v{KR+j}')
e(f'v_cmp_u_f32 vcc, v{KR}, v{KR+7}')
e('s_cbranch_vccz L_PMLA_D')
e(f's_sleep {SLEEP}')
e('s_add_u32 s92, s92, 1')
e(f's_cmp_lt_u32 s92, {MAXPOLL}')
e('s_cbranch_scc1 L_PMLA')
lab('L_PMLA_D')
lab('L_P2_SKIP')
e('s_barrier')
stamp()
e('s_cmp_lt_u32 s14, 4')
e('s_cbranch_scc1 L_C1_SKIP')
AP = KR
srd(SX, 's64', 's65', 2048)
e(f'v_lshlrev_b32 v{a_}, 4, v{TID4}')
e(f'v_lshlrev_b32 v{VX}, 3, v{TID4}')
e(f'buffer_load_dwordx2 v[{T}:{T+1}], v{VX}, s[{SX}:{SX+3}], 0 offen')
e('s_mov_b32 s99, 0')
lab('L_C1_RETRY')
for kk in range(16):
    e(f's_mov_b32 s93, {ATTN_PART + kk*4096}')
    e(f'buffer_load_dwordx4 v[{AP+4*kk}:{AP+4*kk+3}], v{a_}, s[{SWS}:{SWS+3}], s93 offen sc1')
e('s_waitcnt vmcnt(0)')
for kk in range(1, 16):
    for j in range(4):
        e(f'v_add_f32 v{AP+j}, v{AP+j}, v{AP+4*kk+j}')
e(f'v_add_f32 v{T+2}, v{AP}, v{AP+1}')
e(f'v_add_f32 v{T+3}, v{AP+2}, v{AP+3}')
e(f'v_cmp_u_f32 vcc, v{T+2}, v{T+3}')
e('s_cbranch_vccz L_C1_OK')
e('s_add_u32 s99, s99, 1')
e(f's_cmp_lt_u32 s99, {MAXPOLL}')
e('s_cbranch_scc1 L_C1_RETRY')
lab('L_C1_OK')
H = S
e(f'v_lshlrev_b32 v{H}, 16, v{T}')
e(f'v_and_b32 v{H+1}, 0xffff0000, v{T}')
e(f'v_lshlrev_b32 v{H+2}, 16, v{T+1}')
e(f'v_and_b32 v{H+3}, 0xffff0000, v{T+1}')
for j in range(4):
    bf16_round(AP+j, T+2)
    e(f'v_add_f32 v{H+j}, v{H+j}, v{AP+j}')
    bf16_round(H+j, T+2)
e(f'ds_write_b128 v{a_}, v[{H}:{H+3}] offset:{HB}')
mean, var, tq, rcp = T+3, T+4, T+5, T+6
e(f'v_add_f32 v{mean}, v{H}, v{H+1}')
e(f'v_add_f32 v{tq}, v{H+2}, v{H+3}')
e(f'v_add_f32 v{mean}, v{mean}, v{tq}')
wave_allreduce_sum(mean, tq)
e(f'v_lshlrev_b32 v{c_}, 2, v{WAVE}')
e(f'ds_write_b32 v{c_}, v{mean} offset:{WS1}')
e('s_waitcnt lgkmcnt(0)')
lab('L_C1_SKIP')
e('s_barrier')
e('s_cmp_lt_u32 s14, 4')
e('s_cbranch_scc1 L_C2_SKIP')
e(f'v_and_b32 v{part_}, 6, v{WAVE}')
e(f'v_lshlrev_b32 v{part_}, 2, v{part_}')
e(f'ds_read_b64 v[{P}:{P+1}], v{part_} offset:{WS1}')
e('s_waitcnt lgkmcnt(0)')
e(f'v_add_f32 v{mean}, v{P}, v{P+1}')
e(f'v_mul_f32 v{mean}, {INV512:#x}, v{mean}')
for j in range(4):
    e(f'v_sub_f32 v{H+4+j}, v{H+j}, v{mean}')
e(f'v_mul_f32 v{var}, v{H+4}, v{H+4}')
for j in range(1, 4):
    e(f'v_fmac_f32 v{var}, v{H+4+j}, v{H+4+j}')
e('s_nop 1')
wave_allreduce_sum(var, tq)
e(f'ds_write_b32 v{c_}, v{var} offset:{WS2}')
e('s_waitcnt lgkmcnt(0)')
lab('L_C2_SKIP')
e('s_barrier')
e('s_cmp_lt_u32 s14, 4')
e('s_cbranch_scc1 L_C3_SKIP')
e(f'ds_read_b64 v[{P}:{P+1}], v{part_} offset:{WS2}')
e('s_waitcnt lgkmcnt(0)')
e(f'v_add_f32 v{var}, v{P}, v{P+1}')
e(f'v_mul_f32 v{var}, {INV512:#x}, v{var}')
ln_finish(mean, var, tq, rcp)
for j in range(4):
    ln_elem(H+4+j, H+j, mean, var, rcp, tq, P+2, P+3)
e(f'ds_write_b128 v{a_}, v[{H+4}:{H+7}] offset:{HN}')
e('s_waitcnt lgkmcnt(0)')
lab('L_C3_SKIP')
e('s_barrier')
e('s_cmp_ge_u32 s14, 4')
e('s_cbranch_scc1 L_DONE')
e(f'v_lshrrev_b32 v{a_}, 1, v0')
e(f'v_lshlrev_b32 v{a_}, 2, v{a_}')
for b in range(2):
    for i in range(4):
        e(f'ds_read_b32 v{XS+b*4+i}, v{a_} offset:{HN+b*2048+i*512}')
e('s_waitcnt lgkmcnt(0)')
for i in range(4):
    unpack8(WGUr+4*i, T)
    for b in range(2):
        for j in range(4):
            pk_bc('mul' if i == 0 else 'fma', A+b*8+2*j, T+2*j, XS+b*4+i)
reduce_scatter16(A, (8, 4, 2))
e(f'v_lshlrev_b32 v{a_}, 7, v{WAVE}')
e(f'v_and_b32 v{c_}, 1, v0')
e(f'v_lshl_add_u32 v{a_}, v{c_}, 6, v{a_}')
e(f'v_and_b32 v{c_}, 48, v0')
e(f'v_add_u32 v{a_}, v{a_}, v{c_}')
e(f'ds_write_b128 v{a_}, v[{A}:{A+3}] offset:{REDC}')
e('s_waitcnt lgkmcnt(0)')
e('s_barrier')
e('s_cmp_lg_u32 s14, 0')
e('s_cbranch_scc1 L_C4_SKIP')
e('s_mov_b64 exec, 0xffff')
e(f'v_lshlrev_b32 v{a_}, 2, v0')
for w in range(4):
    e(f'ds_read_b32 v{A+w}, v{a_} offset:{REDC+w*128}')
    e(f'ds_read_b32 v{A+4+w}, v{a_} offset:{REDC+w*128+64}')
e('s_waitcnt lgkmcnt(0)')
for w in range(1, 4):
    e(f'v_add_f32 v{A}, v{A}, v{A+w}')
    e(f'v_add_f32 v{A+4}, v{A+4}, v{A+4+w}')
bf16_round(A, T)
bf16_round(A+4, T)
e(f'v_mul_f32 v{T+1}, s98, v{A}')
e(f'v_exp_f32 v{T+1}, -v{T+1}')
e('s_nop 0')
e(f'v_add_f32 v{T+1}, 1.0, v{T+1}')
e(f'v_rcp_f32 v{T+2}, v{T+1}')
e('s_nop 0')
e(f'v_mul_f32 v{T+3}, v{A}, v{T+2}')
e(f'v_fma_f32 v{T+4}, -v{T+3}, v{T+1}, v{A}')
e(f'v_fma_f32 v{T+3}, v{T+4}, v{T+2}, v{T+3}')
bf16_round(T+3, T)
e(f'v_mul_f32 v{T+3}, v{T+3}, v{A+4}')
bf16_round(T+3, T)
e(f'v_lshrrev_b32 v{a_}, 3, v0')
e(f'v_and_b32 v{c_}, 7, v0')
e(f'v_lshlrev_b32 v{a_}, 13, v{a_}')
e(f'v_lshl_add_u32 v{a_}, v{c_}, 2, v{a_}')
e('s_lshl_b32 s93, s12, 5')
e(f's_add_u32 s93, s93, {GU_BUF}')
e(f'buffer_store_dword v{T+3}, v{a_}, s[{SWS}:{SWS+3}], s93 offen sc1')
e('s_mov_b64 exec, -1')
stamp()
lab('L_C4_SKIP')
e('s_cmp_ge_u32 s11, 8')
e('s_cbranch_scc1 L_DONE')
e(f'v_lshlrev_b32 v{a_}, 2, v0')
G = 48
e('s_mov_b32 s99, 0')
lab('L_D_RETRY')
for b in range(2):
    for i in range(7):
        e(f's_mov_b32 s93, {GU_BUF + b*8192 + i*1024}')
        e(f'buffer_load_dword v{G+b*7+i}, v{a_}, s[{SWS}:{SWS+3}], s93 offen sc1')
e('s_waitcnt vmcnt(0)')
e(f'v_add_f32 v{T}, v{G}, v{G+1}')
e(f'v_add_f32 v{T+1}, v{G+2}, v{G+3}')
for i in range(4, 14, 2):
    e(f'v_add_f32 v{T}, v{T}, v{G+i}')
    e(f'v_add_f32 v{T+1}, v{T+1}, v{G+i+1}')
e(f'v_cmp_u_f32 vcc, v{T}, v{T+1}')
e('s_cbranch_vccz L_D_OK')
e('s_add_u32 s99, s99, 1')
e(f's_cmp_lt_u32 s99, {MAXPOLL}')
e('s_cbranch_scc1 L_D_RETRY')
lab('L_D_OK')
stamp()
for i in range(7):
    unpack8(WDr+4*i, T)
    for b in range(2):
        for j in range(4):
            pk_bc('mul' if i == 0 else 'fma', A+b*8+2*j, T+2*j, G+b*7+i)
reduce_scatter16(A, (8, 4, 2, 1))
e(f'v_lshlrev_b32 v{a_}, 6, v{WAVE}')
e(f'v_and_b32 v{c_}, 48, v0')
e(f'v_add_u32 v{a_}, v{a_}, v{c_}')
e(f'ds_write_b128 v{a_}, v[{A}:{A+3}] offset:{REDD}')
e('s_waitcnt lgkmcnt(0)')
e('s_barrier')
e('s_cmp_lg_u32 s14, 0')
e('s_cbranch_scc1 L_DONE')
e('s_mov_b64 exec, 0xffff')
e(f'v_lshlrev_b32 v{a_}, 2, v0')
for w in range(4):
    e(f'ds_read_b32 v{A+w}, v{a_} offset:{REDD+w*64}')
e(f'v_lshrrev_b32 v{part_}, 3, v0')
e(f'v_and_b32 v{c_}, 7, v0')
e(f'v_lshlrev_b32 v{part_}, 9, v{part_}')
e(f'v_add_u32 v{part_}, v{part_}, v{c_}')
e('s_lshl_b32 s93, s13, 3')
e(f'v_add_u32 v{part_}, s93, v{part_}')
e(f'v_lshlrev_b32 v{VX}, 2, v{part_}')
e(f'ds_read_b32 v{T}, v{VX} offset:{HB}')
e('s_waitcnt lgkmcnt(0)')
for w in range(1, 4):
    e(f'v_add_f32 v{A}, v{A}, v{A+w}')
bf16_round(A, T+1)
e(f'v_add_f32 v{A}, v{A}, v{T}')
e(f'v_cvt_pk_bf16_f32 v{A}, v{A}, v{A}')
e(f'v_lshlrev_b32 v{VX}, 1, v{part_}')
e(f'buffer_store_short v{A}, v{VX}, s[{SOUT}:{SOUT+3}], 0 offen')
e('s_mov_b64 exec, -1')
stamp()
lab('L_DONE')
e('s_endpgm')

hdr = list(HDR)
hdr.append(f'; @launch grid=(256,1,1) block=(1024,1,1) lds={LDS_TOTAL}')
hdr.append('.amdgcn_target "amdgcn-amd-amdhsa--gfx950"')
txt = '\n'.join(hdr) + '\n' + '\n'.join(out) + '\n'
txt += f'''.section .rodata,"a"
.p2align 6
.amdhsa_kernel {NAME}
  .amdhsa_next_free_vgpr 128
  .amdhsa_next_free_sgpr 102
  .amdhsa_accum_offset 128
  .amdhsa_group_segment_fixed_size 0
  .amdhsa_kernarg_size 96
  .amdhsa_user_sgpr_count 2
  .amdhsa_user_sgpr_kernarg_segment_ptr 1
  .amdhsa_system_sgpr_workgroup_id_x 1
  .amdhsa_float_denorm_mode_32 3
.end_amdhsa_kernel
'''
open(sys.argv[1] if len(sys.argv) > 1 else 'sequential_preLN__mha_block_cached__swiglu_ffn__decode.s', 'w').write(txt)
```

```python
import struct, sys, os

HDR = open('sequential_preLN__mha_block_cached__swiglu_ffn__decode.s.ref').read().split('\n')
HDR = [l for l in HDR if l.startswith(';') and '@launch' not in l and 'Override' not in l and 'grid=ceil' not in l]
SLEEP = int(os.environ.get('SLEEP', '4'))
STAMP = int(os.environ.get('STAMP', '0'))
STAMP_BASE = 0xE0000
MAXPOLL = 0x40000
XMAP = int(os.environ.get('XMAP', '1'))

def f2u(x):
    return struct.unpack('<I', struct.pack('<f', x))[0]

L2E = f2u(1.4426950408889634)
SCALE = f2u(128 ** -0.5)
EPS = f2u(1e-5)
INV512 = f2u(1.0 / 512)

PART_O = 0
PART_ML = 0x40000
ATTN_PART = 0x80000
GU_BUF = 0xC0000
WS_SIZE = 0x100000
CNT_CLEAN = 128; CNT_HB = 0

out = []
def e(s):
    out.append('    ' + s)
def lab(s):
    out.append(s + ':')

def srd(d, base_lo, base_hi, nrec):
    e(f's_mov_b32 s{d}, {base_lo}')
    e(f's_and_b32 s{d+1}, {base_hi}, 0xffff')
    e(f's_mov_b32 s{d+2}, {nrec}')
    e(f's_mov_b32 s{d+3}, 0x00020000')

def bf16_round(v, tmp):
    e(f'v_cvt_pk_bf16_f32 v{tmp}, v{v}, v{v}')
    e(f'v_lshlrev_b32 v{v}, 16, v{tmp}')

def row_reduce(vals, rots=(8, 4, 2, 1), op='add'):
    for rot in rots:
        if len(vals) < 3:
            e('s_nop 1')
        for v in vals:
            e(f'v_{op}_f32_dpp v{v}, v{v}, v{v} row_ror:{rot} row_mask:0xf bank_mask:0xf')
    e('s_nop 1')

def cross_row_allreduce(vals, tmps):
    for ins in ('v_permlane16_swap_b32', 'v_permlane32_swap_b32'):
        for v, t in zip(vals, tmps):
            e(f'v_mov_b32 v{t}, v{v}')
        e('s_nop 1')
        for v, t in zip(vals, tmps):
            e(f'{ins} v{v}, v{t}')
        e('s_nop 1')
        for v, t in zip(vals, tmps):
            e(f'v_add_f32 v{v}, v{v}, v{t}')
        e('s_nop 1')

def unpack8(src, dst):
    for j in range(4):
        e(f'v_lshlrev_b32 v{dst+2*j}, 16, v{src+j}')
        e(f'v_and_b32 v{dst+2*j+1}, 0xffff0000, v{src+j}')

def pk_bc(op, acc, src, sc):
    if sc % 2 == 0:
        pair = f'v[{sc}:{sc+1}]'; sel = 0
    else:
        pair = f'v[{sc-1}:{sc}]'; sel = 1
    if op == 'fma':
        mods = 'op_sel_hi:[1,0,1]' if sel == 0 else 'op_sel:[0,1,0] op_sel_hi:[1,1,1]'
        e(f'v_pk_fma_f32 v[{acc}:{acc+1}], v[{src}:{src+1}], {pair}, v[{acc}:{acc+1}] {mods}')
    else:
        mods = 'op_sel_hi:[1,0]' if sel == 0 else 'op_sel:[0,1] op_sel_hi:[1,1]'
        e(f'v_pk_mul_f32 v[{acc}:{acc+1}], v[{src}:{src+1}], {pair} {mods}')

stamp_n = [0]
def stamp():
    if not STAMP: return
    i = stamp_n[0]; stamp_n[0] += 1
    if STAMP == 3 and i not in (0, 8): return
    e('s_cmp_lg_u32 s14, 0')
    e(f's_cbranch_scc1 L_ST_{i}')
    e('s_memrealtime s[4:5]')
    e('s_waitcnt lgkmcnt(0)')
    e('s_mov_b64 s[8:9], exec')
    e('s_mov_b64 exec, 1')
    if STAMP == 1:
        e('s_lshl_b32 s6, s2, 7')
        e(f's_add_u32 s6, s6, {STAMP_BASE + i*8}')
        e('v_mov_b32 v62, s4')
        e('v_mov_b32 v63, s5')
        e('v_mov_b32 v3, 0')
        e('buffer_store_dwordx2 v[62:63], v3, s[36:39], s6 offen')
    else:
        e('v_mov_b32 v62, s4')
        e(f'v_mov_b32 v3, {4*i}')
        e('buffer_atomic_umax v62, v3, s[40:43], 0 offen')
        if i == 0:
            e('s_not_b32 s4, s4')
            e('v_mov_b32 v63, s4')
            e('v_mov_b32 v3, 60')
            e('buffer_atomic_umax v63, v3, s[40:43], 0 offen')
    e('s_mov_b64 exec, s[8:9]')
    lab(f'L_ST_{i}')

NAME = 'sequential_preLN__mha_block_cached__swiglu_ffn__decode_kernel'
out.append('.text')
out.append(f'.globl {NAME}')
out.append('.p2align 8')
out.append(f'.type {NAME},@function')
lab(NAME)

XN = 0; QRED = 2048; QB = 10240; MB = 10496; LB = 10752; ACC = 11008; RED2 = 43776; LP = 47872
XO = 47936; REDB = 49984; HN = 54080; HB = 58176; WS1 = 62272; WS2 = 62336; REDC = 62400; REDD = 64448
LDS_TOTAL = 65472

LANE = 1; WAVE = 2; VX = 3
Q = 4; ACCV = 8; S = 16; P = 24; T = 32
VM = 40; VL = 41; VMN = 42; VAL = 44; VOFF = 46; VOFF2 = 47
WO = 48; WGU = 52; WD = 56
KR = 64; VR = 96
SK = 20; SV = 24; SX = 28; SWQ = 32; SWS = 36; SDBG = 40; SWO = 44; SG = 48; SU = 52; SD = 56; SOUT = 60
e('s_cmp_ge_u32 s2, 256')
e('s_cbranch_scc1 L_DONE')
e('s_load_dwordx16 s[64:79], s[0:1], 0')
e('s_load_dwordx8 s[80:87], s[0:1], 64')
e(f'v_and_b32 v{LANE}, 63, v0')
e(f'v_lshrrev_b32 v{WAVE}, 6, v0')
e('s_nop 0')
e(f'v_readfirstlane_b32 s14, v{WAVE}')
e('s_and_b32 s10, s2, 7')
e('s_lshr_b32 s11, s2, 3')
if XMAP:
    e('s_and_b32 s17, s11, 3')
    e('s_lshl_b32 s17, s17, 3')
    e('s_add_u32 s17, s17, s10')
    e('s_lshr_b32 s16, s11, 2')
    e('s_and_b32 s16, s16, 1')
    e('s_lshl_b32 s15, s16, 5')
    e('s_add_u32 s15, s15, s17')
    e('s_lshr_b32 s3, s11, 3')
    e('s_lshl_b32 s18, s15, 2')
    e('s_add_u32 s3, s3, s18')
else:
    e('s_mov_b32 s3, s2')
    e('s_lshr_b32 s15, s2, 2')
    e('s_lshr_b32 s16, s15, 5')
    e('s_and_b32 s17, s15, 31')
e('s_and_b32 s90, s11, 1')
e('s_lshl_b32 s91, s10, 1')
e('s_add_u32 s90, s90, s91')
e('s_lshr_b32 s91, s11, 1')
e('s_mul_i32 s12, s10, 28')
e('s_add_u32 s12, s12, s11')
e('s_lshl_b32 s13, s10, 3')
e('s_add_u32 s13, s13, s11')
e('s_waitcnt lgkmcnt(0)')
e('s_lshl_b32 s18, s3, 20')
e('s_lshr_b32 s19, s3, 12')
e('s_add_u32 s88, s66, s18')
e('s_addc_u32 s89, s67, s19')
srd(SK, 's88', 's89', 0x100000)
e('s_add_u32 s88, s68, s18')
e('s_addc_u32 s89, s69, s19')
srd(SV, 's88', 's89', 0x100000)
e('s_lshl_b32 s18, s16, 10')
e('s_add_u32 s88, s64, s18')
e('s_addc_u32 s89, s65, 0')
srd(SX, 's88', 's89', 1024)
e('s_lshl_b32 s18, s17, 8')
e('s_add_u32 s88, s70, s18')
e('s_addc_u32 s89, s71, 0')
e('s_sub_u32 s19, 0x400000, s18')
srd(SWQ, 's88', 's89', 's19')
srd(SWS, 's86', 's87', WS_SIZE)
srd(SDBG, 's84', 's85', 256)
e('s_lshl_b32 s18, s91, 18')
e('s_lshl_b32 s19, s90, 6')
e('s_add_u32 s18, s18, s19')
e('s_add_u32 s88, s72, s18')
e('s_addc_u32 s89, s73, 0')
e('s_sub_u32 s19, 0x400000, s18')
srd(SWO, 's88', 's89', 's19')
e('s_lshl_b32 s18, s12, 4')
e(f's_sub_u32 s19, {512*3584}, s18')
e('s_cmp_lt_u32 s11, 28')
e('s_cselect_b32 s19, s19, 0')
e('s_cselect_b32 s18, s18, 0')
e('s_add_u32 s88, s76, s18')
e('s_addc_u32 s89, s77, 0')
srd(SG, 's88', 's89', 's19')
e('s_add_u32 s88, s78, s18')
e('s_addc_u32 s89, s79, 0')
srd(SU, 's88', 's89', 's19')
e('s_lshl_b32 s18, s13, 4')
e(f's_sub_u32 s19, {1792*1024}, s18')
e('s_cmp_lt_u32 s11, 8')
e('s_cselect_b32 s19, s19, 0')
e('s_cselect_b32 s18, s18, 0')
e('s_add_u32 s88, s80, s18')
e('s_addc_u32 s89, s81, 0')
srd(SD, 's88', 's89', 's19')
srd(SOUT, 's82', 's83', 2048)
stamp()

e('s_cmp_ge_u32 s14, 2')
e('s_cbranch_scc1 L_CLEAN_SKIP')
e(f'v_mov_b32 v{T}, -1')
e(f'v_mov_b32 v{T+1}, -1')
e(f'v_lshlrev_b32 v{VX}, 2, v0')
e('s_lshl_b32 s93, s3, 9')
e(f'buffer_store_dword v{T}, v{VX}, s[{SWS}:{SWS+3}], s93 offen offset:{PART_O} sc1')
e('s_cmp_lg_u32 s14, 0')
e('s_cbranch_scc1 L_CLEAN_SKIP')
e(f'v_lshrrev_b32 v{VX}, 5, v0')
e(f'v_and_b32 v{T+2}, 31, v0')
e(f'v_lshlrev_b32 v{VX}, 11, v{VX}')
e(f'v_lshl_add_u32 v{VX}, v{T+2}, 2, v{VX}')
e('s_lshl_b32 s93, s91, 12')
e('s_lshl_b32 s92, s90, 7')
e('s_add_u32 s93, s93, s92')
e(f's_add_u32 s93, s93, {ATTN_PART}')
e(f'buffer_store_dword v{T}, v{VX}, s[{SWS}:{SWS+3}], s93 offen sc1')
e('s_mov_b64 exec, 0xffff')
e(f'v_lshrrev_b32 v{VX}, 3, v0')
e(f'v_and_b32 v{T+2}, 7, v0')
e(f'v_lshlrev_b32 v{VX}, 13, v{VX}')
e(f'v_lshl_add_u32 v{VX}, v{T+2}, 2, v{VX}')
e('s_lshl_b32 s93, s12, 5')
e(f's_add_u32 s93, s93, {GU_BUF}')
e('s_cmp_ge_u32 s11, 28')
e('s_cbranch_scc1 L_CLEAN_NOGU')
e(f'buffer_store_dword v{T}, v{VX}, s[{SWS}:{SWS+3}], s93 offen sc1')
lab('L_CLEAN_NOGU')
e('s_mov_b64 exec, 1')
e(f'v_mov_b32 v{VX}, 0')
e('s_lshl_b32 s93, s3, 3')
e(f's_add_u32 s93, s93, {PART_ML}')
e(f'buffer_store_dwordx2 v[{T}:{T+1}], v{VX}, s[{SWS}:{SWS+3}], s93 offen sc1')
e('s_mov_b64 exec, -1')
e('s_nop 1')
lab('L_CLEAN_SKIP')

e(f'v_lshlrev_b32 v{VX}, 4, v{LANE}')
XRAW = 4
WQR = [48, 52, 56, 60, 28, 32, 36, 40]
e(f'buffer_load_dwordx4 v[{XRAW}:{XRAW+3}], v{VX}, s[{SX}:{SX+3}], 0 offen')
e(f'v_lshrrev_b32 v{VX}, 4, v0')
e(f'v_lshlrev_b32 v{VX}, 13, v{VX}')
e(f'v_and_b32 v24, 15, v0')
e(f'v_lshl_add_u32 v{VX}, v24, 4, v{VX}')
for i in range(8):
    e(f's_mov_b32 s93, {i*524288}')
    e(f'buffer_load_dwordx4 v[{WQR[i]}:{WQR[i]+3}], v{VX}, s[{SWQ}:{SWQ+3}], s93 offen')
e(f'v_lshlrev_b32 v{VOFF}, 13, v{WAVE}')
e(f'v_lshl_add_u32 v{VOFF}, v{LANE}, 4, v{VOFF}')
e(f'v_add_u32 v{VOFF2}, 4096, v{VOFF}')
e('s_mov_b32 s94, 0')
def kv_loads(R, srdb, soff):
    for i in range(8):
        vo = VOFF if i < 4 else VOFF2
        e(f'buffer_load_dwordx4 v[{R+4*i}:{R+4*i+3}], v{vo}, s[{srdb}:{srdb+3}], {soff} offen offset:{(i%4)*1024} nt')
kv_loads(KR, SK, 's94')
kv_loads(VR, SV, 's94')

e('s_waitcnt vmcnt(24)')
X = 8; D = 16
t0, t1, t2, t3, t4, t5 = 24, 25, 26, 27, 44, 45
unpack8(XRAW, X)
e(f'v_add_f32 v{t0}, v{X}, v{X+1}')
for j in range(2, 8):
    e(f'v_add_f32 v{t0}, v{t0}, v{X+j}')
def wave_allreduce_sum(v, t):
    row_reduce([v])
    cross_row_allreduce([v], [t])
def ln_finish(mean, var, tmp, rcp):
    bf16_round(var, tmp)
    bf16_round(mean, tmp)
    e(f'v_add_f32 v{var}, {EPS:#x}, v{var}')
    bf16_round(var, tmp)
    e(f'v_sqrt_f32 v{var}, v{var}')
    e('s_nop 0')
    bf16_round(var, tmp)
    e(f'v_rcp_f32 v{rcp}, v{var}')
    e('s_nop 0')
def ln_elem(dst, src, mean, den, rcp, ta, tb, tc):
    e(f'v_sub_f32 v{dst}, v{src}, v{mean}')
    bf16_round(dst, ta)
    e(f'v_mul_f32 v{tb}, v{dst}, v{rcp}')
    e(f'v_fma_f32 v{tc}, -v{tb}, v{den}, v{dst}')
    e(f'v_fma_f32 v{dst}, v{tc}, v{rcp}, v{tb}')
    bf16_round(dst, ta)
wave_allreduce_sum(t0, t1)
e(f'v_mul_f32 v{t0}, {INV512:#x}, v{t0}')
for j in range(8):
    e(f'v_sub_f32 v{D+j}, v{X+j}, v{t0}')
e(f'v_mul_f32 v{t2}, v{D}, v{D}')
for j in range(1, 8):
    e(f'v_fmac_f32 v{t2}, v{D+j}, v{D+j}')
e('s_nop 1')
wave_allreduce_sum(t2, t1)
e(f'v_mul_f32 v{t2}, {INV512:#x}, v{t2}')
ln_finish(t0, t2, t1, t3)
for j in range(8):
    ln_elem(D+j, X+j, t0, t2, t3, t1, t4, t5)
e(f'v_lshlrev_b32 v{VX}, 5, v{LANE}')
e(f'ds_write_b128 v{VX}, v[{D}:{D+3}] offset:{XN}')
e(f'ds_write_b128 v{VX}, v[{D+4}:{D+7}] offset:{XN+16}')
e('s_waitcnt lgkmcnt(0)')
e('s_barrier')
e('s_cmp_lg_u32 s14, 0')
e('s_cbranch_scc1 L_CS_SKIP')
e('s_mov_b64 exec, 1')
e(f'v_mov_b32 v{VX}, {CNT_CLEAN}')
e(f'v_mov_b32 v{t0}, 1')
e(f'buffer_atomic_add v{t0}, v{VX}, s[{SDBG}:{SDBG+3}], 0 offen')
e('s_mov_b64 exec, -1')
lab('L_CS_SKIP')
XSC = 4; QA = 12; QT = 20
e(f'v_lshrrev_b32 v{VX}, 4, v0')
e(f'v_lshlrev_b32 v{VX}, 2, v{VX}')
for i in range(8):
    e(f'ds_read_b32 v{XSC+i}, v{VX} offset:{XN+i*256}')
e('s_waitcnt vmcnt(16) lgkmcnt(0)')
for i in range(8):
    unpack8(WQR[i], QT)
    for j in range(4):
        pk_bc('mul' if i == 0 else 'fma', QA+2*j, QT+2*j, XSC+i)
e('s_nop 1')
cross_row_allreduce([QA+j for j in range(8)], [QT+j for j in range(8)])
e(f'v_lshlrev_b32 v{VX}, 9, v{WAVE}')
e(f'v_and_b32 v{QT}, 15, v0')
e(f'v_lshl_add_u32 v{VX}, v{QT}, 5, v{VX}')
e(f'ds_write_b128 v{VX}, v[{QA}:{QA+3}] offset:{QRED}')
e(f'ds_write_b128 v{VX}, v[{QA+4}:{QA+7}] offset:{QRED+16}')
e('s_waitcnt lgkmcnt(0)')
e('s_barrier')
e('s_cmp_ge_u32 s14, 2')
e('s_cbranch_scc1 L_QSKIP')
e(f'v_lshlrev_b32 v{VX}, 2, v0')
for w in range(16):
    e(f'ds_read_b32 v{S+w}, v{VX} offset:{QRED+w*512}')
e('s_waitcnt lgkmcnt(0)')
for w in range(1, 16):
    e(f'v_add_f32 v{S}, v{S}, v{S+w}')
e(f'v_cvt_pk_bf16_f32 v{S}, v{S}, v{S}')
e(f'v_lshlrev_b32 v{VX}, 1, v0')
e(f'ds_write_b16 v{VX}, v{S} offset:{QB}')
e('s_waitcnt lgkmcnt(0)')
lab('L_QSKIP')
e('s_barrier')
e(f'v_and_b32 v{VX}, 15, v0')
e(f'v_lshlrev_b32 v{VX}, 4, v{VX}')
e(f'ds_read_b128 v[{Q}:{Q+3}], v{VX} offset:{QB}')
e(f'v_mov_b32 v{VM}, 0xff800000')
e(f'v_mov_b32 v{VL}, 0')
for j in range(8):
    e(f'v_mov_b32 v{ACCV+j}, 0')
e(f's_mov_b32 s96, {SCALE:#x}')
e(f's_mov_b32 s97, {SCALE:#x}')
e(f's_mov_b32 s98, {L2E:#x}')
e('s_waitcnt lgkmcnt(0)')
if os.environ.get('XST'): stamp()
lab('L_LOOP')
e('s_add_u32 s95, s94, 0x20000')
e('s_waitcnt vmcnt(8)')
for j in range(4):
    for i in range(8):
        src2 = '0' if j == 0 else f'v{S+i}'
        e(f'v_dot2_f32_bf16 v{S+i}, v{KR+4*i+j}, v{Q+j}, {src2}')
kv_loads(KR, SK, 's95')
row_reduce([S+i for i in range(8)])
for i in range(0, 8, 2):
    e(f'v_cvt_pk_bf16_f32 v{T+i}, v{S+i}, v{S+i+1}')
for i in range(0, 8, 2):
    e(f'v_lshlrev_b32 v{S+i}, 16, v{T+i}')
    e(f'v_and_b32 v{S+i+1}, 0xffff0000, v{T+i}')
for i in range(0, 8, 2):
    e(f'v_pk_mul_f32 v[{S+i}:{S+i+1}], v[{S+i}:{S+i+1}], s[96:97]')
for i in range(0, 8, 2):
    e(f'v_cvt_pk_bf16_f32 v{T+i}, v{S+i}, v{S+i+1}')
for i in range(0, 8, 2):
    e(f'v_lshlrev_b32 v{S+i}, 16, v{T+i}')
    e(f'v_and_b32 v{S+i+1}, 0xffff0000, v{T+i}')
e(f'v_max3_f32 v{VMN}, v{S}, v{S+1}, v{VM}')
e(f'v_max3_f32 v{T}, v{S+2}, v{S+3}, v{S+4}')
e(f'v_max3_f32 v{T+1}, v{S+5}, v{S+6}, v{S+7}')
e(f'v_max3_f32 v{VMN}, v{VMN}, v{T}, v{T+1}')
e(f'v_mul_f32 v{T+2}, s98, v{VMN}')
e(f'v_fma_f32 v{VAL}, v{VM}, s98, -v{T+2}')
e(f'v_exp_f32 v{VAL}, v{VAL}')
for i in range(8):
    e(f'v_fma_f32 v{P+i}, v{S+i}, s98, -v{T+2}')
for i in range(8):
    e(f'v_exp_f32 v{P+i}, v{P+i}')
e(f'v_mov_b32 v{VAL+1}, v{VAL}')
e(f'v_mov_b32 v{VM}, v{VMN}')
e(f'v_mul_f32 v{VL}, v{VL}, v{VAL}')
for j in range(4):
    e(f'v_pk_mul_f32 v[{ACCV+2*j}:{ACCV+2*j+1}], v[{ACCV+2*j}:{ACCV+2*j+1}], v[{VAL}:{VAL+1}]')
for i in range(8):
    e(f'v_add_f32 v{VL}, v{VL}, v{P+i}')
e('s_waitcnt vmcnt(8)')
for i in range(8):
    unpack8(VR+4*i, T)
    for j in range(4):
        pk_bc('fma', ACCV+2*j, T+2*j, P+i)
kv_loads(VR, SV, 's95')
e('s_mov_b32 s94, s95')
e('s_cmp_lt_u32 s94, 0x100000')
e('s_cbranch_scc1 L_LOOP')

PF = int(os.environ.get('PF', '1'))
if PF:
    e('s_cmp_lg_u32 s14, 8')
    e('s_cbranch_scc1 L_PF_SKIP')
    e('s_getpc_b64 s[92:93]')
    lab('L_PF_HERE')
    e('s_add_u32 s92, s92, L_PF_SKIP-L_PF_HERE')
    e('s_addc_u32 s93, s93, 0')
    e(f'v_lshlrev_b32 v{VX}, 6, v{LANE}')
    for i in range(2):
        e(f'global_load_dword v{T+i}, v{VX}, s[92:93]')
        e(f'v_add_u32 v{VX}, 4096, v{VX}')
    lab('L_PF_SKIP')
WOr = 64; WGUr = 80; WDr = 96
c_, part_, a_ = 40, 41, 44
TID4 = 45
e('s_cmp_ge_u32 s14, 4')
e('s_cbranch_scc1 L_WLOAD_SKIP')
e(f'v_lshrrev_b32 v{VX}, 2, v0')
e(f'v_lshlrev_b32 v{VX}, 10, v{VX}')
e(f'v_and_b32 v{T}, 3, v0')
e(f'v_lshl_add_u32 v{VX}, v{T}, 4, v{VX}')
for i in range(4):
    e(f's_mov_b32 s93, {i*65536}')
    e(f'buffer_load_dwordx4 v[{WOr+4*i}:{WOr+4*i+3}], v{VX}, s[{SWO}:{SWO+3}], s93 offen')
e(f'v_lshrrev_b32 v{VX}, 1, v0')
e('s_movk_i32 s93, 3584')
e(f'v_mul_lo_u32 v{VX}, v{VX}, s93')
e('s_mov_b32 s92, 0x55555555')
e('s_mov_b32 s93, 0x55555555')
e('s_mov_b64 exec, s[92:93]')
for i in range(4):
    e(f's_mov_b32 s99, {i*128*3584}')
    e(f'buffer_load_dwordx4 v[{WGUr+4*i}:{WGUr+4*i+3}], v{VX}, s[{SG}:{SG+3}], s99 offen')
e('s_not_b64 exec, exec')
for i in range(4):
    e(f's_mov_b32 s99, {i*128*3584}')
    e(f'buffer_load_dwordx4 v[{WGUr+4*i}:{WGUr+4*i+3}], v{VX}, s[{SU}:{SU+3}], s99 offen')
e('s_mov_b64 exec, -1')
e(f'v_lshlrev_b32 v{VX}, 10, v0')
for i in range(7):
    e(f's_mov_b32 s93, {i*262144}')
    e(f'buffer_load_dwordx4 v[{WDr+4*i}:{WDr+4*i+3}], v{VX}, s[{SD}:{SD+3}], s93 offen')
lab('L_WLOAD_SKIP')
stamp()
e(f'v_lshrrev_b32 v{VX}, 4, v0')
e(f'v_lshlrev_b32 v{VAL}, 9, v{VX}')
e(f'v_and_b32 v{VAL+1}, 15, v0')
e(f'v_lshl_add_u32 v{VAL}, v{VAL+1}, 5, v{VAL}')
e(f'ds_write_b128 v{VAL}, v[{ACCV}:{ACCV+3}] offset:{ACC}')
e(f'ds_write_b128 v{VAL}, v[{ACCV+4}:{ACCV+7}] offset:{ACC+16}')
e(f'v_lshlrev_b32 v{VX}, 2, v{VX}')
e(f'ds_write_b32 v{VX}, v{VM} offset:{MB}')
e(f'ds_write_b32 v{VX}, v{VL} offset:{LB}')
e('s_waitcnt lgkmcnt(0)')
e('s_barrier')
if os.environ.get('XST'): stamp()
e(f'v_lshlrev_b32 v{VX}, 4, v{VAL+1}')
e(f'ds_read_b128 v[{ACCV}:{ACCV+3}], v{VX} offset:{MB}')
e(f'v_and_b32 v{c_}, 127, v0')
e(f'v_lshrrev_b32 v{part_}, 7, v0')
e(f'v_lshlrev_b32 v{a_}, 5, v{part_}')
e(f'ds_read_b128 v[{S}:{S+3}], v{a_} offset:{MB}')
e(f'ds_read_b128 v[{S+4}:{S+7}], v{a_} offset:{MB+16}')
e(f'ds_read_b128 v[{P}:{P+3}], v{a_} offset:{LB}')
e(f'ds_read_b128 v[{P+4}:{P+7}], v{a_} offset:{LB+16}')
e(f'v_lshlrev_b32 v{a_}, 12, v{part_}')
e(f'v_lshl_add_u32 v{a_}, v{c_}, 2, v{a_}')
for j in range(8):
    e(f'ds_read_b32 v{T+j}, v{a_} offset:{ACC+j*512}')
e('s_waitcnt lgkmcnt(0)')
e(f'v_max3_f32 v{VMN}, v{ACCV}, v{ACCV+1}, v{ACCV+2}')
e(f'v_max_f32 v{VMN}, v{VMN}, v{ACCV+3}')
row_reduce([VMN], op='max')
e(f'v_mul_f32 v{ACCV}, s98, v{VMN}')
for j in range(8):
    e(f'v_fma_f32 v{S+j}, v{S+j}, s98, -v{ACCV}')
for j in range(8):
    e(f'v_exp_f32 v{S+j}, v{S+j}')
e('s_nop 0')
e(f'v_mul_f32 v{ACCV+1}, v{S}, v{T}')
e(f'v_mul_f32 v{ACCV+2}, v{S}, v{P}')
for j in range(1, 8):
    e(f'v_fmac_f32 v{ACCV+1}, v{S+j}, v{T+j}')
    e(f'v_fmac_f32 v{ACCV+2}, v{S+j}, v{P+j}')
e(f'v_lshlrev_b32 v{a_}, 9, v{part_}')
e(f'v_lshl_add_u32 v{a_}, v{c_}, 2, v{a_}')
e(f'ds_write_b32 v{a_}, v{ACCV+1} offset:{RED2}')
e(f'v_lshlrev_b32 v{a_}, 2, v{part_}')
e(f'ds_write_b32 v{a_}, v{ACCV+2} offset:{LP}')
e('s_waitcnt lgkmcnt(0)')
e('s_barrier')
e('s_cmp_ge_u32 s14, 8')
e('s_cbranch_scc1 L_DONE')
e(f'v_and_b32 v{TID4}, 255, v0')
e('s_cmp_ge_u32 s14, 2')
e('s_cbranch_scc1 L_APUB_SKIP')
e(f'v_lshlrev_b32 v{a_}, 2, v0')
for j in range(8):
    e(f'ds_read_b32 v{T+j}, v{a_} offset:{RED2+j*512}')
e(f'v_mov_b32 v{VX}, 0')
e(f'ds_read_b128 v[{P}:{P+3}], v{VX} offset:{LP}')
e(f'ds_read_b128 v[{P+4}:{P+7}], v{VX} offset:{LP+16}')
e('s_waitcnt lgkmcnt(0)')
for j in range(1, 8):
    e(f'v_add_f32 v{T}, v{T}, v{T+j}')
    e(f'v_add_f32 v{P}, v{P}, v{P+j}')
e('s_lshl_b32 s93, s3, 9')
e(f'buffer_store_dword v{T}, v{a_}, s[{SWS}:{SWS+3}], s93 offen offset:{PART_O} sc1')
e(f'v_mov_b32 v{VMN+1}, v{P}')
e('s_cmp_lg_u32 s14, 0')
e('s_cbranch_scc1 L_APUB_SKIP')
e('s_lshl_b32 s93, s3, 3')
e(f's_add_u32 s93, s93, {PART_ML}')
e('s_mov_b64 exec, 1')
e(f'buffer_store_dwordx2 v[{VMN}:{VMN+1}], v{VX}, s[{SWS}:{SWS+3}], s93 offen sc1')
e('s_mov_b64 exec, -1')
stamp()
lab('L_APUB_SKIP')
e('s_cmp_lg_u32 s14, 4')
e('s_cbranch_scc1 L_P1_SKIP')
e(f'v_mov_b32 v{VX}, {CNT_CLEAN}')
e('s_mov_b32 s92, 0')
lab('L_PCLEAN')
e(f'buffer_load_dword v{VAL}, v{VX}, s[{SDBG}:{SDBG+3}], 0 offen sc1')
e('s_waitcnt vmcnt(0)')
e(f'v_readfirstlane_b32 s93, v{VAL}')
e('s_cmp_ge_u32 s93, 256')
e('s_cbranch_scc1 L_PCLEAN_D')
e(f's_sleep {SLEEP}')
e('s_add_u32 s92, s92, 1')
e(f's_cmp_lt_u32 s92, {MAXPOLL}')
e('s_cbranch_scc1 L_PCLEAN')
lab('L_PCLEAN_D')
e('s_mov_b64 exec, 0xffff')
e(f'v_lshrrev_b32 v{VX}, 3, v{LANE}')
e(f'v_and_b32 v{c_}, 7, v{LANE}')
e(f'v_lshlrev_b32 v{VX}, 10, v{VX}')
e(f'v_lshl_add_u32 v{VX}, v{c_}, 3, v{VX}')
e('s_lshl_b32 s93, s91, 6')
e(f's_add_u32 s93, s93, {PART_ML}')
e('s_mov_b32 s92, 0')
lab('L_PML')
e(f'buffer_load_dwordx2 v[{VAL}:{VAL+1}], v{VX}, s[{SWS}:{SWS+3}], s93 offen sc1')
e('s_waitcnt vmcnt(0)')
e(f'v_cmp_u_f32 vcc, v{VAL}, v{VAL+1}')
e('s_cbranch_vccz L_PML_D')
e(f's_sleep {SLEEP}')
e('s_add_u32 s92, s92, 1')
e(f's_cmp_lt_u32 s92, {MAXPOLL}')
e('s_cbranch_scc1 L_PML')
lab('L_PML_D')
e('s_mov_b64 exec, -1')
e(f'v_and_b32 v{TID4}, 255, v0')
lab('L_P1_SKIP')
e('s_barrier')
stamp()
e('s_cmp_lt_u32 s14, 4')
e('s_cbranch_scc1 L_B1_SKIP')
O = S
ML = KR
e(f'v_lshrrev_b32 v{part_}, 7, v{TID4}')
e(f'v_and_b32 v{c_}, 127, v{TID4}')
e(f'v_lshlrev_b32 v{a_}, 11, v{part_}')
e(f'v_lshl_add_u32 v{a_}, v{c_}, 2, v{a_}')
e(f'v_lshlrev_b32 v{VX}, 5, v{part_}')
e('s_mov_b32 s99, 0')
lab('L_B1_RETRY')
for b in range(2):
    e('s_lshl_b32 s93, s91, 12')
    e(f's_add_u32 s93, s93, {PART_O + b*65536}')
    for s_ in range(4):
        e(f'buffer_load_dword v{O+b*4+s_}, v{a_}, s[{SWS}:{SWS+3}], s93 offen offset:{s_*512} sc1')
    e('s_lshl_b32 s92, s91, 6')
    e(f's_add_u32 s92, s92, {PART_ML + b*1024}')
    e(f'buffer_load_dwordx4 v[{ML+b*8}:{ML+b*8+3}], v{VX}, s[{SWS}:{SWS+3}], s92 offen sc1')
    e(f'buffer_load_dwordx4 v[{ML+b*8+4}:{ML+b*8+7}], v{VX}, s[{SWS}:{SWS+3}], s92 offen offset:16 sc1')
e('s_waitcnt vmcnt(0)')
XR = [VOFF, VOFF2]
for b in range(2):
    m = [ML+b*8+2*s_ for s_ in range(4)]
    l = [ML+b*8+2*s_+1 for s_ in range(4)]
    e(f'v_max3_f32 v{T}, v{m[0]}, v{m[1]}, v{m[2]}')
    e(f'v_max_f32 v{T}, v{T}, v{m[3]}')
    e(f'v_mul_f32 v{T+1}, s98, v{T}')
    for s_ in range(4):
        e(f'v_fma_f32 v{m[s_]}, v{m[s_]}, s98, -v{T+1}')
    for s_ in range(4):
        e(f'v_exp_f32 v{m[s_]}, v{m[s_]}')
    e('s_nop 0')
    e(f'v_mul_f32 v{T+2}, v{m[0]}, v{l[0]}')
    e(f'v_mul_f32 v{T+3}, v{m[0]}, v{O+b*4}')
    for s_ in range(1, 4):
        e(f'v_fmac_f32 v{T+2}, v{m[s_]}, v{l[s_]}')
        e(f'v_fmac_f32 v{T+3}, v{m[s_]}, v{O+b*4+s_}')
    e(f'v_rcp_f32 v{T+4}, v{T+2}')
    e('s_nop 0')
    e(f'v_mul_f32 v{T+5}, v{T+3}, v{T+4}')
    e(f'v_fma_f32 v{T+6}, -v{T+5}, v{T+2}, v{T+3}')
    e(f'v_fma_f32 v{XR[b]}, v{T+6}, v{T+4}, v{T+5}')
e(f'v_cmp_u_f32 vcc, v{XR[0]}, v{XR[1]}')
e('s_cbranch_vccz L_B1_OK')
e('s_add_u32 s99, s99, 1')
e(f's_cmp_lt_u32 s99, {MAXPOLL}')
e('s_cbranch_scc1 L_B1_RETRY')
lab('L_B1_OK')
e(f'v_lshlrev_b32 v{a_}, 2, v{TID4}')
for b in range(2):
    bf16_round(XR[b], T+6)
    e(f'ds_write_b32 v{a_}, v{XR[b]} offset:{XO+b*1024}')
e('s_waitcnt lgkmcnt(0)')
lab('L_B1_SKIP')
e('s_barrier')

def reduce_scatter16(A, rots):
    e('s_nop 1')
    for i in range(8):
        e(f'v_permlane32_swap_b32 v{A+i}, v{A+i+8}')
    e('s_nop 1')
    for i in range(8):
        e(f'v_add_f32 v{A+i}, v{A+i}, v{A+i+8}')
    e('s_nop 1')
    for i in range(4):
        e(f'v_permlane16_swap_b32 v{A+i}, v{A+i+4}')
    e('s_nop 1')
    for i in range(4):
        e(f'v_add_f32 v{A+i}, v{A+i}, v{A+i+4}')
    e('s_nop 1')
    for rot in rots:
        for i in range(4):
            e(f'v_add_f32_dpp v{A+i}, v{A+i}, v{A+i} row_ror:{rot} row_mask:0xf bank_mask:0xf')
    e('s_nop 1')

A = S
XS = 48
e('s_cmp_ge_u32 s14, 4')
e('s_cbranch_scc1 L_B2_SKIP')
e(f'v_and_b32 v{a_}, 0xfc, v0')
for b in range(2):
    for i in range(4):
        e(f'ds_read_b32 v{XS+b*4+i}, v{a_} offset:{XO+b*1024+i*256}')
e('s_waitcnt vmcnt(0) lgkmcnt(0)')
for i in range(4):
    unpack8(WOr+4*i, T)
    for b in range(2):
        for j in range(4):
            pk_bc('mul' if i == 0 else 'fma', A+b*8+2*j, T+2*j, XS+b*4+i)
reduce_scatter16(A, (8, 4))
e(f'v_lshlrev_b32 v{a_}, 8, v{WAVE}')
e(f'v_and_b32 v{c_}, 3, v0')
e(f'v_lshl_add_u32 v{a_}, v{c_}, 5, v{a_}')
e(f'v_and_b32 v{c_}, 32, v0')
e(f'v_lshl_add_u32 v{a_}, v{c_}, 2, v{a_}')
e(f'v_and_b32 v{c_}, 16, v0')
e(f'v_add_u32 v{a_}, v{a_}, v{c_}')
e(f'ds_write_b128 v{a_}, v[{A}:{A+3}] offset:{REDB}')
e('s_waitcnt lgkmcnt(0)')
lab('L_B2_SKIP')
e('s_barrier')
e('s_cmp_lg_u32 s14, 0')
e('s_cbranch_scc1 L_B3_SKIP')
e(f'v_lshlrev_b32 v{a_}, 2, v0')
for w in range(4):
    e(f'ds_read_b32 v{T+w}, v{a_} offset:{REDB+w*256}')
e('s_waitcnt lgkmcnt(0)')
e(f'v_add_f32 v{T}, v{T}, v{T+1}')
e(f'v_add_f32 v{T+2}, v{T+2}, v{T+3}')
e(f'v_add_f32 v{T}, v{T}, v{T+2}')
e(f'v_lshrrev_b32 v{a_}, 5, v0')
e(f'v_and_b32 v{c_}, 31, v0')
e(f'v_lshlrev_b32 v{a_}, 11, v{a_}')
e(f'v_lshl_add_u32 v{a_}, v{c_}, 2, v{a_}')
e('s_lshl_b32 s93, s91, 12')
e('s_lshl_b32 s92, s90, 7')
e('s_add_u32 s93, s93, s92')
e(f's_add_u32 s93, s93, {ATTN_PART}')
e(f'buffer_store_dword v{T}, v{a_}, s[{SWS}:{SWS+3}], s93 offen sc1')
stamp()
lab('L_B3_SKIP')
e('s_cmp_ge_u32 s11, 28')
e('s_cbranch_scc1 L_DONE')
e('s_cmp_lg_u32 s14, 4')
e('s_cbranch_scc1 L_P2_SKIP')
e(f'v_lshlrev_b32 v{VX}, 5, v{LANE}')
e(f's_mov_b32 s93, {PART_ML}')
e('s_mov_b32 s92, 0')
lab('L_PMLA')
e(f'buffer_load_dwordx4 v[{KR}:{KR+3}], v{VX}, s[{SWS}:{SWS+3}], s93 offen sc1')
e(f'buffer_load_dwordx4 v[{KR+4}:{KR+7}], v{VX}, s[{SWS}:{SWS+3}], s93 offen offset:16 sc1')
e('s_waitcnt vmcnt(0)')
for j in range(1, 7):
    e(f'v_add_f32 v{KR}, v{KR}, v{KR+j}')
e(f'v_cmp_u_f32 vcc, v{KR}, v{KR+7}')
e('s_cbranch_vccz L_PMLA_D')
e(f's_sleep {SLEEP}')
e('s_add_u32 s92, s92, 1')
e(f's_cmp_lt_u32 s92, {MAXPOLL}')
e('s_cbranch_scc1 L_PMLA')
lab('L_PMLA_D')
lab('L_P2_SKIP')
e('s_barrier')
stamp()
e('s_cmp_lt_u32 s14, 4')
e('s_cbranch_scc1 L_C1_SKIP')
AP = KR
srd(SX, 's64', 's65', 2048)
e(f'v_lshlrev_b32 v{a_}, 4, v{TID4}')
e(f'v_lshlrev_b32 v{VX}, 3, v{TID4}')
e(f'buffer_load_dwordx2 v[{T}:{T+1}], v{VX}, s[{SX}:{SX+3}], 0 offen')
e('s_mov_b32 s99, 0')
lab('L_C1_RETRY')
for kk in range(16):
    e(f's_mov_b32 s93, {ATTN_PART + kk*4096}')
    e(f'buffer_load_dwordx4 v[{AP+4*kk}:{AP+4*kk+3}], v{a_}, s[{SWS}:{SWS+3}], s93 offen sc1')
e('s_waitcnt vmcnt(0)')
for kk in range(1, 16):
    for j in range(4):
        e(f'v_add_f32 v{AP+j}, v{AP+j}, v{AP+4*kk+j}')
e(f'v_add_f32 v{T+2}, v{AP}, v{AP+1}')
e(f'v_add_f32 v{T+3}, v{AP+2}, v{AP+3}')
e(f'v_cmp_u_f32 vcc, v{T+2}, v{T+3}')
e('s_cbranch_vccz L_C1_OK')
e('s_add_u32 s99, s99, 1')
e(f's_cmp_lt_u32 s99, {MAXPOLL}')
e('s_cbranch_scc1 L_C1_RETRY')
lab('L_C1_OK')
H = S
e(f'v_lshlrev_b32 v{H}, 16, v{T}')
e(f'v_and_b32 v{H+1}, 0xffff0000, v{T}')
e(f'v_lshlrev_b32 v{H+2}, 16, v{T+1}')
e(f'v_and_b32 v{H+3}, 0xffff0000, v{T+1}')
for j in range(4):
    bf16_round(AP+j, T+2)
    e(f'v_add_f32 v{H+j}, v{H+j}, v{AP+j}')
    bf16_round(H+j, T+2)
e(f'ds_write_b128 v{a_}, v[{H}:{H+3}] offset:{HB}')
mean, var, tq, rcp = T+3, T+4, T+5, T+6
e(f'v_add_f32 v{mean}, v{H}, v{H+1}')
e(f'v_add_f32 v{tq}, v{H+2}, v{H+3}')
e(f'v_add_f32 v{mean}, v{mean}, v{tq}')
wave_allreduce_sum(mean, tq)
e(f'v_lshlrev_b32 v{c_}, 2, v{WAVE}')
e(f'ds_write_b32 v{c_}, v{mean} offset:{WS1}')
e('s_waitcnt lgkmcnt(0)')
lab('L_C1_SKIP')
e('s_barrier')
e('s_cmp_lt_u32 s14, 4')
e('s_cbranch_scc1 L_C2_SKIP')
e(f'v_and_b32 v{part_}, 6, v{WAVE}')
e(f'v_lshlrev_b32 v{part_}, 2, v{part_}')
e(f'ds_read_b64 v[{P}:{P+1}], v{part_} offset:{WS1}')
e('s_waitcnt lgkmcnt(0)')
e(f'v_add_f32 v{mean}, v{P}, v{P+1}')
e(f'v_mul_f32 v{mean}, {INV512:#x}, v{mean}')
for j in range(4):
    e(f'v_sub_f32 v{H+4+j}, v{H+j}, v{mean}')
e(f'v_mul_f32 v{var}, v{H+4}, v{H+4}')
for j in range(1, 4):
    e(f'v_fmac_f32 v{var}, v{H+4+j}, v{H+4+j}')
e('s_nop 1')
wave_allreduce_sum(var, tq)
e(f'ds_write_b32 v{c_}, v{var} offset:{WS2}')
e('s_waitcnt lgkmcnt(0)')
lab('L_C2_SKIP')
e('s_barrier')
e('s_cmp_lt_u32 s14, 4')
e('s_cbranch_scc1 L_C3_SKIP')
e(f'ds_read_b64 v[{P}:{P+1}], v{part_} offset:{WS2}')
e('s_waitcnt lgkmcnt(0)')
e(f'v_add_f32 v{var}, v{P}, v{P+1}')
e(f'v_mul_f32 v{var}, {INV512:#x}, v{var}')
ln_finish(mean, var, tq, rcp)
for j in range(4):
    ln_elem(H+4+j, H+j, mean, var, rcp, tq, P+2, P+3)
e(f'ds_write_b128 v{a_}, v[{H+4}:{H+7}] offset:{HN}')
e('s_waitcnt lgkmcnt(0)')
lab('L_C3_SKIP')
e('s_barrier')
e('s_cmp_ge_u32 s14, 4')
e('s_cbranch_scc1 L_DONE')
e(f'v_lshrrev_b32 v{a_}, 1, v0')
e(f'v_lshlrev_b32 v{a_}, 2, v{a_}')
for b in range(2):
    for i in range(4):
        e(f'ds_read_b32 v{XS+b*4+i}, v{a_} offset:{HN+b*2048+i*512}')
e('s_waitcnt lgkmcnt(0)')
for i in range(4):
    unpack8(WGUr+4*i, T)
    for b in range(2):
        for j in range(4):
            pk_bc('mul' if i == 0 else 'fma', A+b*8+2*j, T+2*j, XS+b*4+i)
reduce_scatter16(A, (8, 4, 2))
e(f'v_lshlrev_b32 v{a_}, 7, v{WAVE}')
e(f'v_and_b32 v{c_}, 1, v0')
e(f'v_lshl_add_u32 v{a_}, v{c_}, 6, v{a_}')
e(f'v_and_b32 v{c_}, 48, v0')
e(f'v_add_u32 v{a_}, v{a_}, v{c_}')
e(f'ds_write_b128 v{a_}, v[{A}:{A+3}] offset:{REDC}')
e('s_waitcnt lgkmcnt(0)')
e('s_barrier')
e('s_cmp_lg_u32 s14, 0')
e('s_cbranch_scc1 L_C4_SKIP')
e('s_mov_b64 exec, 0xffff')
e(f'v_lshlrev_b32 v{a_}, 2, v0')
for w in range(4):
    e(f'ds_read_b32 v{A+w}, v{a_} offset:{REDC+w*128}')
    e(f'ds_read_b32 v{A+4+w}, v{a_} offset:{REDC+w*128+64}')
e('s_waitcnt lgkmcnt(0)')
for w in range(1, 4):
    e(f'v_add_f32 v{A}, v{A}, v{A+w}')
    e(f'v_add_f32 v{A+4}, v{A+4}, v{A+4+w}')
bf16_round(A, T)
bf16_round(A+4, T)
e(f'v_mul_f32 v{T+1}, s98, v{A}')
e(f'v_exp_f32 v{T+1}, -v{T+1}')
e('s_nop 0')
e(f'v_add_f32 v{T+1}, 1.0, v{T+1}')
e(f'v_rcp_f32 v{T+2}, v{T+1}')
e('s_nop 0')
e(f'v_mul_f32 v{T+3}, v{A}, v{T+2}')
e(f'v_fma_f32 v{T+4}, -v{T+3}, v{T+1}, v{A}')
e(f'v_fma_f32 v{T+3}, v{T+4}, v{T+2}, v{T+3}')
bf16_round(T+3, T)
e(f'v_mul_f32 v{T+3}, v{T+3}, v{A+4}')
bf16_round(T+3, T)
e(f'v_lshrrev_b32 v{a_}, 3, v0')
e(f'v_and_b32 v{c_}, 7, v0')
e(f'v_lshlrev_b32 v{a_}, 13, v{a_}')
e(f'v_lshl_add_u32 v{a_}, v{c_}, 2, v{a_}')
e('s_lshl_b32 s93, s12, 5')
e(f's_add_u32 s93, s93, {GU_BUF}')
e(f'buffer_store_dword v{T+3}, v{a_}, s[{SWS}:{SWS+3}], s93 offen sc1')
e('s_mov_b64 exec, -1')
stamp()
lab('L_C4_SKIP')
e('s_cmp_ge_u32 s11, 8')
e('s_cbranch_scc1 L_DONE')
e(f'v_lshlrev_b32 v{a_}, 2, v0')
G = 48
e('s_mov_b32 s99, 0')
lab('L_D_RETRY')
for b in range(2):
    for i in range(7):
        e(f's_mov_b32 s93, {GU_BUF + b*8192 + i*1024}')
        e(f'buffer_load_dword v{G+b*7+i}, v{a_}, s[{SWS}:{SWS+3}], s93 offen sc1')
e('s_waitcnt vmcnt(0)')
e(f'v_add_f32 v{T}, v{G}, v{G+1}')
e(f'v_add_f32 v{T+1}, v{G+2}, v{G+3}')
for i in range(4, 14, 2):
    e(f'v_add_f32 v{T}, v{T}, v{G+i}')
    e(f'v_add_f32 v{T+1}, v{T+1}, v{G+i+1}')
e(f'v_cmp_u_f32 vcc, v{T}, v{T+1}')
e('s_cbranch_vccz L_D_OK')
e('s_add_u32 s99, s99, 1')
e(f's_cmp_lt_u32 s99, {MAXPOLL}')
e('s_cbranch_scc1 L_D_RETRY')
lab('L_D_OK')
stamp()
for i in range(7):
    unpack8(WDr+4*i, T)
    for b in range(2):
        for j in range(4):
            pk_bc('mul' if i == 0 else 'fma', A+b*8+2*j, T+2*j, G+b*7+i)
reduce_scatter16(A, (8, 4, 2, 1))
e(f'v_lshlrev_b32 v{a_}, 6, v{WAVE}')
e(f'v_and_b32 v{c_}, 48, v0')
e(f'v_add_u32 v{a_}, v{a_}, v{c_}')
e(f'ds_write_b128 v{a_}, v[{A}:{A+3}] offset:{REDD}')
e('s_waitcnt lgkmcnt(0)')
e('s_barrier')
e('s_cmp_lg_u32 s14, 0')
e('s_cbranch_scc1 L_DONE')
e('s_mov_b64 exec, 0xffff')
e(f'v_lshlrev_b32 v{a_}, 2, v0')
for w in range(4):
    e(f'ds_read_b32 v{A+w}, v{a_} offset:{REDD+w*64}')
e(f'v_lshrrev_b32 v{part_}, 3, v0')
e(f'v_and_b32 v{c_}, 7, v0')
e(f'v_lshlrev_b32 v{part_}, 9, v{part_}')
e(f'v_add_u32 v{part_}, v{part_}, v{c_}')
e('s_lshl_b32 s93, s13, 3')
e(f'v_add_u32 v{part_}, s93, v{part_}')
e(f'v_lshlrev_b32 v{VX}, 2, v{part_}')
e(f'ds_read_b32 v{T}, v{VX} offset:{HB}')
e('s_waitcnt lgkmcnt(0)')
for w in range(1, 4):
    e(f'v_add_f32 v{A}, v{A}, v{A+w}')
bf16_round(A, T+1)
e(f'v_add_f32 v{A}, v{A}, v{T}')
e(f'v_cvt_pk_bf16_f32 v{A}, v{A}, v{A}')
e(f'v_lshlrev_b32 v{VX}, 1, v{part_}')
e(f'buffer_store_short v{A}, v{VX}, s[{SOUT}:{SOUT+3}], 0 offen')
e('s_mov_b64 exec, -1')
stamp()
lab('L_DONE')
e('s_endpgm')

hdr = list(HDR)
hdr.append(f'; @launch grid=(256,1,1) block=(1024,1,1) lds={LDS_TOTAL}')
hdr.append('.amdgcn_target "amdgcn-amd-amdhsa--gfx950"')
txt = '\n'.join(hdr) + '\n' + '\n'.join(out) + '\n'
txt += f'''.section .rodata,"a"
.p2align 6
.amdhsa_kernel {NAME}
  .amdhsa_next_free_vgpr 128
  .amdhsa_next_free_sgpr 102
  .amdhsa_accum_offset 128
  .amdhsa_group_segment_fixed_size 0
  .amdhsa_kernarg_size 96
  .amdhsa_user_sgpr_count 2
  .amdhsa_user_sgpr_kernarg_segment_ptr 1
  .amdhsa_system_sgpr_workgroup_id_x 1
  .amdhsa_float_denorm_mode_32 3
.end_amdhsa_kernel
'''
open(sys.argv[1] if len(sys.argv) > 1 else 'sequential_preLN__mha_block_cached__swiglu_ffn__decode.s', 'w').write(txt)
```

```python
import struct, sys, os

HDR = open('sequential_preLN__mha_block_cached__swiglu_ffn__decode.s.ref').read().split('\n')
HDR = [l for l in HDR if l.startswith(';') and '@launch' not in l and 'Override' not in l and 'grid=ceil' not in l]
SLEEP = int(os.environ.get('SLEEP', '4'))
STAMP = int(os.environ.get('STAMP', '0'))
STAMP_BASE = 0xE0000
MAXPOLL = 0x40000
LDF = os.environ.get('LDF', 'nt')
PAT = int(os.environ.get('PAT', '0'))
RSC = int(os.environ.get('RSC', '0'))
RSD = int(os.environ.get('RSD', '0'))
XMAP = int(os.environ.get('XMAP', '1'))

def f2u(x):
    return struct.unpack('<I', struct.pack('<f', x))[0]

L2E = f2u(1.4426950408889634)
SCALE = f2u(128 ** -0.5)
EPS = f2u(1e-5)
INV512 = f2u(1.0 / 512)

PART_O = 0
PART_ML = 0x40000
ATTN_PART = 0x80000
GU_BUF = 0xC0000
WS_SIZE = 0x100000
CNT_CLEAN = 128; CNT_HB = 0

out = []
def e(s):
    out.append('    ' + s)
def lab(s):
    out.append(s + ':')

def srd(d, base_lo, base_hi, nrec):
    e(f's_mov_b32 s{d}, {base_lo}')
    e(f's_and_b32 s{d+1}, {base_hi}, 0xffff')
    e(f's_mov_b32 s{d+2}, {nrec}')
    e(f's_mov_b32 s{d+3}, 0x00020000')

def bf16_round(v, tmp):
    e(f'v_cvt_pk_bf16_f32 v{tmp}, v{v}, v{v}')
    e(f'v_lshlrev_b32 v{v}, 16, v{tmp}')

def row_reduce(vals, rots=(8, 4, 2, 1), op='add'):
    for rot in rots:
        if len(vals) < 3:
            e('s_nop 1')
        for v in vals:
            e(f'v_{op}_f32_dpp v{v}, v{v}, v{v} row_ror:{rot} row_mask:0xf bank_mask:0xf')
    e('s_nop 1')

def cross_row_allreduce(vals, tmps):
    for ins in ('v_permlane16_swap_b32', 'v_permlane32_swap_b32'):
        for v, t in zip(vals, tmps):
            e(f'v_mov_b32 v{t}, v{v}')
        e('s_nop 1')
        for v, t in zip(vals, tmps):
            e(f'{ins} v{v}, v{t}')
        e('s_nop 1')
        for v, t in zip(vals, tmps):
            e(f'v_add_f32 v{v}, v{v}, v{t}')
        e('s_nop 1')

def unpack8(src, dst):
    for j in range(4):
        e(f'v_lshlrev_b32 v{dst+2*j}, 16, v{src+j}')
        e(f'v_and_b32 v{dst+2*j+1}, 0xffff0000, v{src+j}')

def pk_bc(op, acc, src, sc):
    if sc % 2 == 0:
        pair = f'v[{sc}:{sc+1}]'; sel = 0
    else:
        pair = f'v[{sc-1}:{sc}]'; sel = 1
    if op == 'fma':
        mods = 'op_sel_hi:[1,0,1]' if sel == 0 else 'op_sel:[0,1,0] op_sel_hi:[1,1,1]'
        e(f'v_pk_fma_f32 v[{acc}:{acc+1}], v[{src}:{src+1}], {pair}, v[{acc}:{acc+1}] {mods}')
    else:
        mods = 'op_sel_hi:[1,0]' if sel == 0 else 'op_sel:[0,1] op_sel_hi:[1,1]'
        e(f'v_pk_mul_f32 v[{acc}:{acc+1}], v[{src}:{src+1}], {pair} {mods}')

stamp_n = [0]
def stamp(w=0):
    if not STAMP: return
    i = stamp_n[0]; stamp_n[0] += 1
    if STAMP == 3 and i not in (0, 8): return
    e(f's_cmp_lg_u32 s14, {w}')
    e(f's_cbranch_scc1 L_ST_{i}')
    e('s_memrealtime s[4:5]')
    e('s_waitcnt lgkmcnt(0)')
    e('s_mov_b64 s[8:9], exec')
    e('s_mov_b64 exec, 1')
    if STAMP == 1:
        e('s_lshl_b32 s6, s2, 7')
        e(f's_add_u32 s6, s6, {STAMP_BASE + i*8}')
        e('v_mov_b32 v62, s4')
        e('v_mov_b32 v63, s5')
        e('v_mov_b32 v3, 0')
        e('buffer_store_dwordx2 v[62:63], v3, s[36:39], s6 offen')
    else:
        e('v_mov_b32 v62, s4')
        e(f'v_mov_b32 v3, {4*i}')
        e('buffer_atomic_umax v62, v3, s[40:43], 0 offen')
        if i == 0:
            e('s_not_b32 s4, s4')
            e('v_mov_b32 v63, s4')
            e('v_mov_b32 v3, 60')
            e('buffer_atomic_umax v63, v3, s[40:43], 0 offen')
    e('s_mov_b64 exec, s[8:9]')
    lab(f'L_ST_{i}')

NAME = 'sequential_preLN__mha_block_cached__swiglu_ffn__decode_kernel'
out.append('.text')
out.append(f'.globl {NAME}')
out.append('.p2align 8')
out.append(f'.type {NAME},@function')
lab(NAME)

XN = 0; QRED = 2048; QB = 10240; MB = 10496; LB = 10752; ACC = 11008; RED2 = 43776; LP = 47872
XO = 47936; REDB = 49984; HN = 54080; HB = 58176; WS1 = 62272; WS2 = 62336; REDC = 62400; REDD = 64448
LDS_TOTAL = 65472

LANE = 1; WAVE = 2; VX = 3
Q = 4; ACCV = 8; S = 16; P = 24; T = 32
VM = 40; VL = 41; VMN = 42; VAL = 44; VOFF = 46; VOFF2 = 47
WO = 48; WGU = 52; WD = 56
KR = 64; VR = 96
SK = 20; SV = 24; SX = 28; SWQ = 32; SWS = 36; SDBG = 40; SWO = 44; SG = 48; SU = 52; SD = 56; SOUT = 60
e('s_cmp_ge_u32 s2, 256')
e('s_cbranch_scc1 L_DONE')
e('s_load_dwordx16 s[64:79], s[0:1], 0')
e('s_load_dwordx8 s[80:87], s[0:1], 64')
e(f'v_and_b32 v{LANE}, 63, v0')
e(f'v_lshrrev_b32 v{WAVE}, 6, v0')
e('s_nop 0')
e(f'v_readfirstlane_b32 s14, v{WAVE}')
e('s_and_b32 s10, s2, 7')
e('s_lshr_b32 s11, s2, 3')
if XMAP:
    e('s_and_b32 s17, s11, 3')
    e('s_lshl_b32 s17, s17, 3')
    e('s_add_u32 s17, s17, s10')
    e('s_lshr_b32 s16, s11, 2')
    e('s_and_b32 s16, s16, 1')
    e('s_lshl_b32 s15, s16, 5')
    e('s_add_u32 s15, s15, s17')
    e('s_lshr_b32 s3, s11, 3')
    e('s_lshl_b32 s18, s15, 2')
    e('s_add_u32 s3, s3, s18')
else:
    e('s_mov_b32 s3, s2')
    e('s_lshr_b32 s15, s2, 2')
    e('s_lshr_b32 s16, s15, 5')
    e('s_and_b32 s17, s15, 31')
e('s_and_b32 s90, s11, 1')
e('s_lshl_b32 s91, s10, 1')
e('s_add_u32 s90, s90, s91')
e('s_lshr_b32 s91, s11, 1')
e('s_mul_i32 s12, s10, 28')
e('s_add_u32 s12, s12, s11')
e('s_lshl_b32 s13, s10, 3')
e('s_add_u32 s13, s13, s11')
e('s_waitcnt lgkmcnt(0)')
e('s_lshl_b32 s18, s3, 20')
e('s_lshr_b32 s19, s3, 12')
e('s_add_u32 s88, s66, s18')
e('s_addc_u32 s89, s67, s19')
srd(SK, 's88', 's89', 0x100000)
e('s_add_u32 s88, s68, s18')
e('s_addc_u32 s89, s69, s19')
srd(SV, 's88', 's89', 0x100000)
e('s_lshl_b32 s18, s16, 10')
e('s_add_u32 s88, s64, s18')
e('s_addc_u32 s89, s65, 0')
srd(SX, 's88', 's89', 1024)
e('s_lshl_b32 s18, s17, 8')
e('s_add_u32 s88, s70, s18')
e('s_addc_u32 s89, s71, 0')
e('s_sub_u32 s19, 0x400000, s18')
srd(SWQ, 's88', 's89', 's19')
srd(SWS, 's86', 's87', WS_SIZE)
srd(SDBG, 's84', 's85', 256)
e('s_lshl_b32 s18, s91, 18')
e('s_lshl_b32 s19, s90, 6')
e('s_add_u32 s18, s18, s19')
e('s_add_u32 s88, s72, s18')
e('s_addc_u32 s89, s73, 0')
e('s_sub_u32 s19, 0x400000, s18')
srd(SWO, 's88', 's89', 's19')
e('s_lshl_b32 s18, s12, 4')
e(f's_sub_u32 s19, {512*3584}, s18')
e('s_cmp_lt_u32 s11, 28')
e('s_cselect_b32 s19, s19, 0')
e('s_cselect_b32 s18, s18, 0')
e('s_add_u32 s88, s76, s18')
e('s_addc_u32 s89, s77, 0')
srd(SG, 's88', 's89', 's19')
e('s_add_u32 s88, s78, s18')
e('s_addc_u32 s89, s79, 0')
srd(SU, 's88', 's89', 's19')
e('s_lshl_b32 s18, s13, 4')
e(f's_sub_u32 s19, {1792*1024}, s18')
e('s_cmp_lt_u32 s11, 8')
e('s_cselect_b32 s19, s19, 0')
e('s_cselect_b32 s18, s18, 0')
e('s_add_u32 s88, s80, s18')
e('s_addc_u32 s89, s81, 0')
srd(SD, 's88', 's89', 's19')
srd(SOUT, 's82', 's83', 2048)
stamp()

e('s_cmp_ge_u32 s14, 2')
e('s_cbranch_scc1 L_CLEAN_SKIP')
e(f'v_mov_b32 v{T}, -1')
e(f'v_mov_b32 v{T+1}, -1')
e(f'v_lshlrev_b32 v{VX}, 2, v0')
e('s_lshl_b32 s93, s3, 9')
e(f'buffer_store_dword v{T}, v{VX}, s[{SWS}:{SWS+3}], s93 offen offset:{PART_O} sc1')
e('s_cmp_lg_u32 s14, 0')
e('s_cbranch_scc1 L_CLEAN_SKIP')
e(f'v_lshrrev_b32 v{VX}, 5, v0')
e(f'v_and_b32 v{T+2}, 31, v0')
e(f'v_lshlrev_b32 v{VX}, 11, v{VX}')
e(f'v_lshl_add_u32 v{VX}, v{T+2}, 2, v{VX}')
e('s_lshl_b32 s93, s91, 12')
e('s_lshl_b32 s92, s90, 7')
e('s_add_u32 s93, s93, s92')
e(f's_add_u32 s93, s93, {ATTN_PART}')
e(f'buffer_store_dword v{T}, v{VX}, s[{SWS}:{SWS+3}], s93 offen sc1')
e('s_mov_b64 exec, 0xffff')
e(f'v_lshrrev_b32 v{VX}, 3, v0')
e(f'v_and_b32 v{T+2}, 7, v0')
e(f'v_lshlrev_b32 v{VX}, 13, v{VX}')
e(f'v_lshl_add_u32 v{VX}, v{T+2}, 2, v{VX}')
e('s_lshl_b32 s93, s12, 5')
e(f's_add_u32 s93, s93, {GU_BUF}')
e('s_cmp_ge_u32 s11, 28')
e('s_cbranch_scc1 L_CLEAN_NOGU')
e(f'buffer_store_dword v{T}, v{VX}, s[{SWS}:{SWS+3}], s93 offen sc1')
lab('L_CLEAN_NOGU')
e('s_mov_b64 exec, 1')
e(f'v_mov_b32 v{VX}, 0')
e('s_lshl_b32 s93, s3, 3')
e(f's_add_u32 s93, s93, {PART_ML}')
e(f'buffer_store_dwordx2 v[{T}:{T+1}], v{VX}, s[{SWS}:{SWS+3}], s93 offen sc1')
e('s_mov_b64 exec, -1')
e('s_nop 1')
lab('L_CLEAN_SKIP')

e(f'v_lshlrev_b32 v{VX}, 4, v{LANE}')
XRAW = 4
WQR = [48, 52, 56, 60, 28, 32, 36, 40]
e(f'buffer_load_dwordx4 v[{XRAW}:{XRAW+3}], v{VX}, s[{SX}:{SX+3}], 0 offen')
e(f'v_lshrrev_b32 v{VX}, 4, v0')
e(f'v_lshlrev_b32 v{VX}, 13, v{VX}')
e(f'v_and_b32 v24, 15, v0')
e(f'v_lshl_add_u32 v{VX}, v24, 4, v{VX}')
for i in range(8):
    e(f's_mov_b32 s93, {i*524288}')
    e(f'buffer_load_dwordx4 v[{WQR[i]}:{WQR[i]+3}], v{VX}, s[{SWQ}:{SWQ+3}], s93 offen')
e(f'v_lshlrev_b32 v{VOFF}, {[13,16,10][PAT]}, v{WAVE}')
e(f'v_lshl_add_u32 v{VOFF}, v{LANE}, 4, v{VOFF}')
e(f'v_add_u32 v{VOFF2}, 4096, v{VOFF}')
e('s_mov_b32 s94, 0')
def kv_loads(R, srdb, soff):
    for i in range(8):
        if PAT == 2:
            if i == 0:
                e(f'buffer_load_dwordx4 v[{R}:{R+3}], v{VOFF}, s[{srdb}:{srdb+3}], {soff} offen {LDF}')
            else:
                e(f's_add_u32 s99, {soff}, {i*16384}')
                e(f'buffer_load_dwordx4 v[{R+4*i}:{R+4*i+3}], v{VOFF}, s[{srdb}:{srdb+3}], s99 offen {LDF}')
        else:
            vo = VOFF if i < 4 else VOFF2
            e(f'buffer_load_dwordx4 v[{R+4*i}:{R+4*i+3}], v{vo}, s[{srdb}:{srdb+3}], {soff} offen offset:{(i%4)*1024} {LDF}')
kv_loads(KR, SK, 's94')
kv_loads(VR, SV, 's94')

e('s_waitcnt vmcnt(24)')
X = 8; D = 16
t0, t1, t2, t3, t4, t5 = 24, 25, 26, 27, 44, 45
unpack8(XRAW, X)
e(f'v_add_f32 v{t0}, v{X}, v{X+1}')
for j in range(2, 8):
    e(f'v_add_f32 v{t0}, v{t0}, v{X+j}')
def wave_allreduce_sum(v, t):
    row_reduce([v])
    cross_row_allreduce([v], [t])
def ln_finish(mean, var, tmp, rcp):
    bf16_round(var, tmp)
    bf16_round(mean, tmp)
    e(f'v_add_f32 v{var}, {EPS:#x}, v{var}')
    bf16_round(var, tmp)
    e(f'v_sqrt_f32 v{var}, v{var}')
    e('s_nop 0')
    bf16_round(var, tmp)
    e(f'v_rcp_f32 v{rcp}, v{var}')
    e('s_nop 0')
def ln_elem(dst, src, mean, den, rcp, ta, tb, tc):
    e(f'v_sub_f32 v{dst}, v{src}, v{mean}')
    bf16_round(dst, ta)
    e(f'v_mul_f32 v{tb}, v{dst}, v{rcp}')
    e(f'v_fma_f32 v{tc}, -v{tb}, v{den}, v{dst}')
    e(f'v_fma_f32 v{dst}, v{tc}, v{rcp}, v{tb}')
    bf16_round(dst, ta)
wave_allreduce_sum(t0, t1)
e(f'v_mul_f32 v{t0}, {INV512:#x}, v{t0}')
for j in range(8):
    e(f'v_sub_f32 v{D+j}, v{X+j}, v{t0}')
e(f'v_mul_f32 v{t2}, v{D}, v{D}')
for j in range(1, 8):
    e(f'v_fmac_f32 v{t2}, v{D+j}, v{D+j}')
e('s_nop 1')
wave_allreduce_sum(t2, t1)
e(f'v_mul_f32 v{t2}, {INV512:#x}, v{t2}')
ln_finish(t0, t2, t1, t3)
for j in range(8):
    ln_elem(D+j, X+j, t0, t2, t3, t1, t4, t5)
e(f'v_lshlrev_b32 v{VX}, 5, v{LANE}')
e(f'ds_write_b128 v{VX}, v[{D}:{D+3}] offset:{XN}')
e(f'ds_write_b128 v{VX}, v[{D+4}:{D+7}] offset:{XN+16}')
e('s_waitcnt lgkmcnt(0)')
e('s_barrier')
e('s_cmp_lg_u32 s14, 0')
e('s_cbranch_scc1 L_CS_SKIP')
e('s_mov_b64 exec, 1')
e(f'v_mov_b32 v{VX}, {CNT_CLEAN}')
e(f'v_mov_b32 v{t0}, 1')
e(f'buffer_atomic_add v{t0}, v{VX}, s[{SDBG}:{SDBG+3}], 0 offen')
e('s_mov_b64 exec, -1')
lab('L_CS_SKIP')
XSC = 4; QA = 12; QT = 20
e(f'v_lshrrev_b32 v{VX}, 4, v0')
e(f'v_lshlrev_b32 v{VX}, 2, v{VX}')
for i in range(8):
    e(f'ds_read_b32 v{XSC+i}, v{VX} offset:{XN+i*256}')
e('s_waitcnt vmcnt(16) lgkmcnt(0)')
for i in range(8):
    unpack8(WQR[i], QT)
    for j in range(4):
        pk_bc('mul' if i == 0 else 'fma', QA+2*j, QT+2*j, XSC+i)
e('s_nop 1')
cross_row_allreduce([QA+j for j in range(8)], [QT+j for j in range(8)])
e(f'v_lshlrev_b32 v{VX}, 9, v{WAVE}')
e(f'v_and_b32 v{QT}, 15, v0')
e(f'v_lshl_add_u32 v{VX}, v{QT}, 5, v{VX}')
e(f'ds_write_b128 v{VX}, v[{QA}:{QA+3}] offset:{QRED}')
e(f'ds_write_b128 v{VX}, v[{QA+4}:{QA+7}] offset:{QRED+16}')
e('s_waitcnt lgkmcnt(0)')
e('s_barrier')
e('s_cmp_ge_u32 s14, 2')
e('s_cbranch_scc1 L_QSKIP')
e(f'v_lshlrev_b32 v{VX}, 2, v0')
for w in range(16):
    e(f'ds_read_b32 v{S+w}, v{VX} offset:{QRED+w*512}')
e('s_waitcnt lgkmcnt(0)')
for w in range(1, 16):
    e(f'v_add_f32 v{S}, v{S}, v{S+w}')
e(f'v_cvt_pk_bf16_f32 v{S}, v{S}, v{S}')
e(f'v_lshlrev_b32 v{VX}, 1, v0')
e(f'ds_write_b16 v{VX}, v{S} offset:{QB}')
e('s_waitcnt lgkmcnt(0)')
lab('L_QSKIP')
e('s_barrier')
e(f'v_and_b32 v{VX}, 15, v0')
e(f'v_lshlrev_b32 v{VX}, 4, v{VX}')
e(f'ds_read_b128 v[{Q}:{Q+3}], v{VX} offset:{QB}')
e(f'v_mov_b32 v{VM}, 0xff800000')
e(f'v_mov_b32 v{VL}, 0')
for j in range(8):
    e(f'v_mov_b32 v{ACCV+j}, 0')
e(f's_mov_b32 s96, {SCALE:#x}')
e(f's_mov_b32 s97, {SCALE:#x}')
e(f's_mov_b32 s98, {L2E:#x}')
e('s_waitcnt lgkmcnt(0)')
if os.environ.get('XST'): stamp()
lab('L_LOOP')
if os.environ.get('LBAR'): e('s_barrier')
e(f's_add_u32 s95, s94, {0x2000 if PAT == 1 else 0x20000}')
if PAT == 1:
    e('s_cmp_ge_u32 s95, 0x10000')
    e('s_cselect_b32 s95, 0x10000000, s95')
e('s_waitcnt vmcnt(8)')
for j in range(4):
    for i in range(8):
        src2 = '0' if j == 0 else f'v{S+i}'
        e(f'v_dot2_f32_bf16 v{S+i}, v{KR+4*i+j}, v{Q+j}, {src2}')
kv_loads(KR, SK, 's95')
row_reduce([S+i for i in range(8)])
for i in range(0, 8, 2):
    e(f'v_cvt_pk_bf16_f32 v{T+i}, v{S+i}, v{S+i+1}')
for i in range(0, 8, 2):
    e(f'v_lshlrev_b32 v{S+i}, 16, v{T+i}')
    e(f'v_and_b32 v{S+i+1}, 0xffff0000, v{T+i}')
for i in range(0, 8, 2):
    e(f'v_pk_mul_f32 v[{S+i}:{S+i+1}], v[{S+i}:{S+i+1}], s[96:97]')
for i in range(0, 8, 2):
    e(f'v_cvt_pk_bf16_f32 v{T+i}, v{S+i}, v{S+i+1}')
for i in range(0, 8, 2):
    e(f'v_lshlrev_b32 v{S+i}, 16, v{T+i}')
    e(f'v_and_b32 v{S+i+1}, 0xffff0000, v{T+i}')
e(f'v_max3_f32 v{VMN}, v{S}, v{S+1}, v{VM}')
e(f'v_max3_f32 v{T}, v{S+2}, v{S+3}, v{S+4}')
e(f'v_max3_f32 v{T+1}, v{S+5}, v{S+6}, v{S+7}')
e(f'v_max3_f32 v{VMN}, v{VMN}, v{T}, v{T+1}')
e(f'v_mul_f32 v{T+2}, s98, v{VMN}')
e(f'v_fma_f32 v{VAL}, v{VM}, s98, -v{T+2}')
e(f'v_exp_f32 v{VAL}, v{VAL}')
for i in range(8):
    e(f'v_fma_f32 v{P+i}, v{S+i}, s98, -v{T+2}')
for i in range(8):
    e(f'v_exp_f32 v{P+i}, v{P+i}')
e(f'v_mov_b32 v{VAL+1}, v{VAL}')
e(f'v_mov_b32 v{VM}, v{VMN}')
e(f'v_mul_f32 v{VL}, v{VL}, v{VAL}')
for j in range(4):
    e(f'v_pk_mul_f32 v[{ACCV+2*j}:{ACCV+2*j+1}], v[{ACCV+2*j}:{ACCV+2*j+1}], v[{VAL}:{VAL+1}]')
for i in range(8):
    e(f'v_add_f32 v{VL}, v{VL}, v{P+i}')
e('s_waitcnt vmcnt(8)')
for i in range(8):
    unpack8(VR+4*i, T)
    for j in range(4):
        pk_bc('fma', ACCV+2*j, T+2*j, P+i)
kv_loads(VR, SV, 's95')
e('s_mov_b32 s94, s95')
e(f's_cmp_lt_u32 s94, {0x10000 if PAT == 1 else 0x100000}')
e('s_cbranch_scc1 L_LOOP')

PF = int(os.environ.get('PF', '1'))
if PF:
    e('s_cmp_lg_u32 s14, 8')
    e('s_cbranch_scc1 L_PF_SKIP')
    e('s_getpc_b64 s[92:93]')
    lab('L_PF_HERE')
    e('s_add_u32 s92, s92, L_PF_SKIP-L_PF_HERE')
    e('s_addc_u32 s93, s93, 0')
    e(f'v_lshlrev_b32 v{VX}, 6, v{LANE}')
    for i in range(2):
        e(f'global_load_dword v{T+i}, v{VX}, s[92:93]')
        e(f'v_add_u32 v{VX}, 4096, v{VX}')
    lab('L_PF_SKIP')
WOr = 64; WGUr = 80; WDr = 96
c_, part_, a_ = 40, 41, 44
TID4 = 45
e('s_cmp_ge_u32 s14, 4')
e('s_cbranch_scc1 L_WLOAD_SKIP')
e(f'v_lshrrev_b32 v{VX}, 2, v0')
e(f'v_lshlrev_b32 v{VX}, 10, v{VX}')
e(f'v_and_b32 v{T}, 3, v0')
e(f'v_lshl_add_u32 v{VX}, v{T}, 4, v{VX}')
for i in range(4):
    e(f's_mov_b32 s93, {i*65536}')
    e(f'buffer_load_dwordx4 v[{WOr+4*i}:{WOr+4*i+3}], v{VX}, s[{SWO}:{SWO+3}], s93 offen')
e(f'v_lshrrev_b32 v{VX}, 1, v0')
e('s_movk_i32 s93, 3584')
e(f'v_mul_lo_u32 v{VX}, v{VX}, s93')
e('s_mov_b32 s92, 0x55555555')
e('s_mov_b32 s93, 0x55555555')
e('s_mov_b64 exec, s[92:93]')
for i in range(4):
    e(f's_mov_b32 s99, {i*128*3584}')
    e(f'buffer_load_dwordx4 v[{WGUr+4*i}:{WGUr+4*i+3}], v{VX}, s[{SG}:{SG+3}], s99 offen')
e('s_not_b64 exec, exec')
for i in range(4):
    e(f's_mov_b32 s99, {i*128*3584}')
    e(f'buffer_load_dwordx4 v[{WGUr+4*i}:{WGUr+4*i+3}], v{VX}, s[{SU}:{SU+3}], s99 offen')
e('s_mov_b64 exec, -1')
e(f'v_lshlrev_b32 v{VX}, 10, v0')
for i in range(7):
    e(f's_mov_b32 s93, {i*262144}')
    e(f'buffer_load_dwordx4 v[{WDr+4*i}:{WDr+4*i+3}], v{VX}, s[{SD}:{SD+3}], s93 offen')
lab('L_WLOAD_SKIP')
stamp()
e(f'v_lshrrev_b32 v{VX}, 4, v0')
e(f'v_lshlrev_b32 v{VAL}, 9, v{VX}')
e(f'v_and_b32 v{VAL+1}, 15, v0')
e(f'v_lshl_add_u32 v{VAL}, v{VAL+1}, 5, v{VAL}')
e(f'ds_write_b128 v{VAL}, v[{ACCV}:{ACCV+3}] offset:{ACC}')
e(f'ds_write_b128 v{VAL}, v[{ACCV+4}:{ACCV+7}] offset:{ACC+16}')
e(f'v_lshlrev_b32 v{VX}, 2, v{VX}')
e(f'ds_write_b32 v{VX}, v{VM} offset:{MB}')
e(f'ds_write_b32 v{VX}, v{VL} offset:{LB}')
e('s_waitcnt lgkmcnt(0)')
e('s_barrier')
if os.environ.get('XST'): stamp()
e(f'v_lshlrev_b32 v{VX}, 4, v{VAL+1}')
e(f'ds_read_b128 v[{ACCV}:{ACCV+3}], v{VX} offset:{MB}')
e(f'v_and_b32 v{c_}, 127, v0')
e(f'v_lshrrev_b32 v{part_}, 7, v0')
e(f'v_lshlrev_b32 v{a_}, 5, v{part_}')
e(f'ds_read_b128 v[{S}:{S+3}], v{a_} offset:{MB}')
e(f'ds_read_b128 v[{S+4}:{S+7}], v{a_} offset:{MB+16}')
e(f'ds_read_b128 v[{P}:{P+3}], v{a_} offset:{LB}')
e(f'ds_read_b128 v[{P+4}:{P+7}], v{a_} offset:{LB+16}')
e(f'v_lshlrev_b32 v{a_}, 12, v{part_}')
e(f'v_lshl_add_u32 v{a_}, v{c_}, 2, v{a_}')
for j in range(8):
    e(f'ds_read_b32 v{T+j}, v{a_} offset:{ACC+j*512}')
e('s_waitcnt lgkmcnt(0)')
e(f'v_max3_f32 v{VMN}, v{ACCV}, v{ACCV+1}, v{ACCV+2}')
e(f'v_max_f32 v{VMN}, v{VMN}, v{ACCV+3}')
row_reduce([VMN], op='max')
e(f'v_mul_f32 v{ACCV}, s98, v{VMN}')
for j in range(8):
    e(f'v_fma_f32 v{S+j}, v{S+j}, s98, -v{ACCV}')
for j in range(8):
    e(f'v_exp_f32 v{S+j}, v{S+j}')
e('s_nop 0')
e(f'v_mul_f32 v{ACCV+1}, v{S}, v{T}')
e(f'v_mul_f32 v{ACCV+2}, v{S}, v{P}')
for j in range(1, 8):
    e(f'v_fmac_f32 v{ACCV+1}, v{S+j}, v{T+j}')
    e(f'v_fmac_f32 v{ACCV+2}, v{S+j}, v{P+j}')
e(f'v_lshlrev_b32 v{a_}, 9, v{part_}')
e(f'v_lshl_add_u32 v{a_}, v{c_}, 2, v{a_}')
e(f'ds_write_b32 v{a_}, v{ACCV+1} offset:{RED2}')
e(f'v_lshlrev_b32 v{a_}, 2, v{part_}')
e(f'ds_write_b32 v{a_}, v{ACCV+2} offset:{LP}')
e('s_waitcnt lgkmcnt(0)')
e('s_barrier')
e('s_cmp_ge_u32 s14, 8')
e('s_cbranch_scc1 L_DONE')
e(f'v_and_b32 v{TID4}, 255, v0')
e('s_cmp_ge_u32 s14, 2')
e('s_cbranch_scc1 L_APUB_SKIP')
e(f'v_lshlrev_b32 v{a_}, 2, v0')
for j in range(8):
    e(f'ds_read_b32 v{T+j}, v{a_} offset:{RED2+j*512}')
e(f'v_mov_b32 v{VX}, 0')
e(f'ds_read_b128 v[{P}:{P+3}], v{VX} offset:{LP}')
e(f'ds_read_b128 v[{P+4}:{P+7}], v{VX} offset:{LP+16}')
e('s_waitcnt lgkmcnt(0)')
for j in range(1, 8):
    e(f'v_add_f32 v{T}, v{T}, v{T+j}')
    e(f'v_add_f32 v{P}, v{P}, v{P+j}')
e('s_lshl_b32 s93, s3, 9')
e(f'buffer_store_dword v{T}, v{a_}, s[{SWS}:{SWS+3}], s93 offen offset:{PART_O} sc1')
e(f'v_mov_b32 v{VMN+1}, v{P}')
e('s_cmp_lg_u32 s14, 0')
e('s_cbranch_scc1 L_APUB_SKIP')
e('s_lshl_b32 s93, s3, 3')
e(f's_add_u32 s93, s93, {PART_ML}')
e('s_mov_b64 exec, 1')
e(f'buffer_store_dwordx2 v[{VMN}:{VMN+1}], v{VX}, s[{SWS}:{SWS+3}], s93 offen sc1')
e('s_mov_b64 exec, -1')
stamp()
lab('L_APUB_SKIP')
e('s_cmp_lg_u32 s14, 4')
e('s_cbranch_scc1 L_P1_SKIP')
e(f'v_mov_b32 v{VX}, {CNT_CLEAN}')
e('s_mov_b32 s92, 0')
lab('L_PCLEAN')
e(f'buffer_load_dword v{VAL}, v{VX}, s[{SDBG}:{SDBG+3}], 0 offen sc1')
e('s_waitcnt vmcnt(0)')
e(f'v_readfirstlane_b32 s93, v{VAL}')
e('s_cmp_ge_u32 s93, 256')
e('s_cbranch_scc1 L_PCLEAN_D')
e(f's_sleep {SLEEP}')
e('s_add_u32 s92, s92, 1')
e(f's_cmp_lt_u32 s92, {MAXPOLL}')
e('s_cbranch_scc1 L_PCLEAN')
lab('L_PCLEAN_D')
e('s_mov_b64 exec, 0xffff')
e(f'v_lshrrev_b32 v{VX}, 3, v{LANE}')
e(f'v_and_b32 v{c_}, 7, v{LANE}')
e(f'v_lshlrev_b32 v{VX}, 10, v{VX}')
e(f'v_lshl_add_u32 v{VX}, v{c_}, 3, v{VX}')
e('s_lshl_b32 s93, s91, 6')
e(f's_add_u32 s93, s93, {PART_ML}')
e('s_mov_b32 s92, 0')
lab('L_PML')
e(f'buffer_load_dwordx2 v[{VAL}:{VAL+1}], v{VX}, s[{SWS}:{SWS+3}], s93 offen sc1')
e('s_waitcnt vmcnt(0)')
e(f'v_cmp_u_f32 vcc, v{VAL}, v{VAL+1}')
e('s_cbranch_vccz L_PML_D')
e(f's_sleep {SLEEP}')
e('s_add_u32 s92, s92, 1')
e(f's_cmp_lt_u32 s92, {MAXPOLL}')
e('s_cbranch_scc1 L_PML')
lab('L_PML_D')
e('s_mov_b64 exec, -1')
e(f'v_and_b32 v{TID4}, 255, v0')
lab('L_P1_SKIP')
e('s_barrier')
stamp()
e('s_cmp_lt_u32 s14, 4')
e('s_cbranch_scc1 L_B1_SKIP')
O = S
ML = KR
e(f'v_lshrrev_b32 v{part_}, 7, v{TID4}')
e(f'v_and_b32 v{c_}, 127, v{TID4}')
e(f'v_lshlrev_b32 v{a_}, 11, v{part_}')
e(f'v_lshl_add_u32 v{a_}, v{c_}, 2, v{a_}')
e(f'v_lshlrev_b32 v{VX}, 5, v{part_}')
e('s_mov_b32 s99, 0')
lab('L_B1_RETRY')
for b in range(2):
    e('s_lshl_b32 s93, s91, 12')
    e(f's_add_u32 s93, s93, {PART_O + b*65536}')
    for s_ in range(4):
        e(f'buffer_load_dword v{O+b*4+s_}, v{a_}, s[{SWS}:{SWS+3}], s93 offen offset:{s_*512} sc1')
    e('s_lshl_b32 s92, s91, 6')
    e(f's_add_u32 s92, s92, {PART_ML + b*1024}')
    e(f'buffer_load_dwordx4 v[{ML+b*8}:{ML+b*8+3}], v{VX}, s[{SWS}:{SWS+3}], s92 offen sc1')
    e(f'buffer_load_dwordx4 v[{ML+b*8+4}:{ML+b*8+7}], v{VX}, s[{SWS}:{SWS+3}], s92 offen offset:16 sc1')
e('s_waitcnt vmcnt(0)')
XR = [VOFF, VOFF2]
for b in range(2):
    m = [ML+b*8+2*s_ for s_ in range(4)]
    l = [ML+b*8+2*s_+1 for s_ in range(4)]
    e(f'v_max3_f32 v{T}, v{m[0]}, v{m[1]}, v{m[2]}')
    e(f'v_max_f32 v{T}, v{T}, v{m[3]}')
    e(f'v_mul_f32 v{T+1}, s98, v{T}')
    for s_ in range(4):
        e(f'v_fma_f32 v{m[s_]}, v{m[s_]}, s98, -v{T+1}')
    for s_ in range(4):
        e(f'v_exp_f32 v{m[s_]}, v{m[s_]}')
    e('s_nop 0')
    e(f'v_mul_f32 v{T+2}, v{m[0]}, v{l[0]}')
    e(f'v_mul_f32 v{T+3}, v{m[0]}, v{O+b*4}')
    for s_ in range(1, 4):
        e(f'v_fmac_f32 v{T+2}, v{m[s_]}, v{l[s_]}')
        e(f'v_fmac_f32 v{T+3}, v{m[s_]}, v{O+b*4+s_}')
    e(f'v_rcp_f32 v{T+4}, v{T+2}')
    e('s_nop 0')
    e(f'v_mul_f32 v{T+5}, v{T+3}, v{T+4}')
    e(f'v_fma_f32 v{T+6}, -v{T+5}, v{T+2}, v{T+3}')
    e(f'v_fma_f32 v{XR[b]}, v{T+6}, v{T+4}, v{T+5}')
e(f'v_cmp_u_f32 vcc, v{XR[0]}, v{XR[1]}')
e('s_cbranch_vccz L_B1_OK')
e('s_add_u32 s99, s99, 1')
e(f's_cmp_lt_u32 s99, {MAXPOLL}')
e('s_cbranch_scc1 L_B1_RETRY')
lab('L_B1_OK')
if os.environ.get('CST'): stamp(4)
e(f'v_lshlrev_b32 v{a_}, 2, v{TID4}')
for b in range(2):
    bf16_round(XR[b], T+6)
    e(f'ds_write_b32 v{a_}, v{XR[b]} offset:{XO+b*1024}')
e('s_waitcnt lgkmcnt(0)')
lab('L_B1_SKIP')
e('s_barrier')

def reduce_scatter16(A, rots):
    e('s_nop 1')
    for i in range(8):
        e(f'v_permlane32_swap_b32 v{A+i}, v{A+i+8}')
    e('s_nop 1')
    for i in range(8):
        e(f'v_add_f32 v{A+i}, v{A+i}, v{A+i+8}')
    e('s_nop 1')
    for i in range(4):
        e(f'v_permlane16_swap_b32 v{A+i}, v{A+i+4}')
    e('s_nop 1')
    for i in range(4):
        e(f'v_add_f32 v{A+i}, v{A+i}, v{A+i+4}')
    e('s_nop 1')
    for rot in rots:
        for i in range(4):
            e(f'v_add_f32_dpp v{A+i}, v{A+i}, v{A+i} row_ror:{rot} row_mask:0xf bank_mask:0xf')
    e('s_nop 1')

A = S
XS = 48
e('s_cmp_ge_u32 s14, 4')
e('s_cbranch_scc1 L_B2_SKIP')
e(f'v_and_b32 v{a_}, 0xfc, v0')
for b in range(2):
    for i in range(4):
        e(f'ds_read_b32 v{XS+b*4+i}, v{a_} offset:{XO+b*1024+i*256}')
e('s_waitcnt vmcnt(0) lgkmcnt(0)')
for i in range(4):
    unpack8(WOr+4*i, T)
    for b in range(2):
        for j in range(4):
            pk_bc('mul' if i == 0 else 'fma', A+b*8+2*j, T+2*j, XS+b*4+i)
reduce_scatter16(A, (8, 4))
e(f'v_lshlrev_b32 v{a_}, 8, v{WAVE}')
e(f'v_and_b32 v{c_}, 3, v0')
e(f'v_lshl_add_u32 v{a_}, v{c_}, 5, v{a_}')
e(f'v_and_b32 v{c_}, 32, v0')
e(f'v_lshl_add_u32 v{a_}, v{c_}, 2, v{a_}')
e(f'v_and_b32 v{c_}, 16, v0')
e(f'v_add_u32 v{a_}, v{a_}, v{c_}')
e(f'ds_write_b128 v{a_}, v[{A}:{A+3}] offset:{REDB}')
e('s_waitcnt lgkmcnt(0)')
lab('L_B2_SKIP')
e('s_barrier')
e('s_cmp_lg_u32 s14, 0')
e('s_cbranch_scc1 L_B3_SKIP')
e(f'v_lshlrev_b32 v{a_}, 2, v0')
for w in range(4):
    e(f'ds_read_b32 v{T+w}, v{a_} offset:{REDB+w*256}')
e('s_waitcnt lgkmcnt(0)')
e(f'v_add_f32 v{T}, v{T}, v{T+1}')
e(f'v_add_f32 v{T+2}, v{T+2}, v{T+3}')
e(f'v_add_f32 v{T}, v{T}, v{T+2}')
e(f'v_lshrrev_b32 v{a_}, 5, v0')
e(f'v_and_b32 v{c_}, 31, v0')
e(f'v_lshlrev_b32 v{a_}, 11, v{a_}')
e(f'v_lshl_add_u32 v{a_}, v{c_}, 2, v{a_}')
e('s_lshl_b32 s93, s91, 12')
e('s_lshl_b32 s92, s90, 7')
e('s_add_u32 s93, s93, s92')
e(f's_add_u32 s93, s93, {ATTN_PART}')
e(f'buffer_store_dword v{T}, v{a_}, s[{SWS}:{SWS+3}], s93 offen sc1')
stamp()
lab('L_B3_SKIP')
e('s_cmp_ge_u32 s11, 28')
e('s_cbranch_scc1 L_DONE')
e('s_cmp_lg_u32 s14, 4')
e('s_cbranch_scc1 L_P2_SKIP')
e(f'v_lshlrev_b32 v{VX}, 5, v{LANE}')
e(f's_mov_b32 s93, {PART_ML}')
e('s_mov_b32 s92, 0')
lab('L_PMLA')
e(f'buffer_load_dwordx4 v[{KR}:{KR+3}], v{VX}, s[{SWS}:{SWS+3}], s93 offen sc1')
e(f'buffer_load_dwordx4 v[{KR+4}:{KR+7}], v{VX}, s[{SWS}:{SWS+3}], s93 offen offset:16 sc1')
e('s_waitcnt vmcnt(0)')
for j in range(1, 7):
    e(f'v_add_f32 v{KR}, v{KR}, v{KR+j}')
e(f'v_cmp_u_f32 vcc, v{KR}, v{KR+7}')
e('s_cbranch_vccz L_PMLA_D')
e(f's_sleep {SLEEP}')
e('s_add_u32 s92, s92, 1')
e(f's_cmp_lt_u32 s92, {MAXPOLL}')
e('s_cbranch_scc1 L_PMLA')
lab('L_PMLA_D')
lab('L_P2_SKIP')
e('s_barrier')
stamp()
e('s_cmp_lt_u32 s14, 4')
e('s_cbranch_scc1 L_C1_SKIP')
AP = KR
srd(SX, 's64', 's65', 2048)
e(f'v_lshlrev_b32 v{a_}, 4, v{TID4}')
e(f'v_lshlrev_b32 v{VX}, 3, v{TID4}')
e(f'buffer_load_dwordx2 v[{T}:{T+1}], v{VX}, s[{SX}:{SX+3}], 0 offen')
e('s_mov_b32 s99, 0')
lab('L_C1_RETRY')
for kk in range(16):
    e(f's_mov_b32 s93, {ATTN_PART + kk*4096}')
    e(f'buffer_load_dwordx4 v[{AP+4*kk}:{AP+4*kk+3}], v{a_}, s[{SWS}:{SWS+3}], s93 offen sc1')
e('s_waitcnt vmcnt(0)')
for kk in range(1, 16):
    for j in range(4):
        e(f'v_add_f32 v{AP+j}, v{AP+j}, v{AP+4*kk+j}')
e(f'v_add_f32 v{T+2}, v{AP}, v{AP+1}')
e(f'v_add_f32 v{T+3}, v{AP+2}, v{AP+3}')
e(f'v_cmp_u_f32 vcc, v{T+2}, v{T+3}')
e('s_cbranch_vccz L_C1_OK')
if RSC: e(f's_sleep {RSC}')
e('s_add_u32 s99, s99, 1')
e(f's_cmp_lt_u32 s99, {MAXPOLL}')
e('s_cbranch_scc1 L_C1_RETRY')
lab('L_C1_OK')
if os.environ.get('CST'): stamp(4)
H = S
e(f'v_lshlrev_b32 v{H}, 16, v{T}')
e(f'v_and_b32 v{H+1}, 0xffff0000, v{T}')
e(f'v_lshlrev_b32 v{H+2}, 16, v{T+1}')
e(f'v_and_b32 v{H+3}, 0xffff0000, v{T+1}')
for j in range(4):
    bf16_round(AP+j, T+2)
    e(f'v_add_f32 v{H+j}, v{H+j}, v{AP+j}')
    bf16_round(H+j, T+2)
e(f'ds_write_b128 v{a_}, v[{H}:{H+3}] offset:{HB}')
mean, var, tq, rcp = T+3, T+4, T+5, T+6
e(f'v_add_f32 v{mean}, v{H}, v{H+1}')
e(f'v_add_f32 v{tq}, v{H+2}, v{H+3}')
e(f'v_add_f32 v{mean}, v{mean}, v{tq}')
wave_allreduce_sum(mean, tq)
e(f'v_lshlrev_b32 v{c_}, 2, v{WAVE}')
e(f'ds_write_b32 v{c_}, v{mean} offset:{WS1}')
e('s_waitcnt lgkmcnt(0)')
lab('L_C1_SKIP')
e('s_barrier')
e('s_cmp_lt_u32 s14, 4')
e('s_cbranch_scc1 L_C2_SKIP')
e(f'v_and_b32 v{part_}, 6, v{WAVE}')
e(f'v_lshlrev_b32 v{part_}, 2, v{part_}')
e(f'ds_read_b64 v[{P}:{P+1}], v{part_} offset:{WS1}')
e('s_waitcnt lgkmcnt(0)')
e(f'v_add_f32 v{mean}, v{P}, v{P+1}')
e(f'v_mul_f32 v{mean}, {INV512:#x}, v{mean}')
for j in range(4):
    e(f'v_sub_f32 v{H+4+j}, v{H+j}, v{mean}')
e(f'v_mul_f32 v{var}, v{H+4}, v{H+4}')
for j in range(1, 4):
    e(f'v_fmac_f32 v{var}, v{H+4+j}, v{H+4+j}')
e('s_nop 1')
wave_allreduce_sum(var, tq)
e(f'ds_write_b32 v{c_}, v{var} offset:{WS2}')
e('s_waitcnt lgkmcnt(0)')
lab('L_C2_SKIP')
e('s_barrier')
e('s_cmp_lt_u32 s14, 4')
e('s_cbranch_scc1 L_C3_SKIP')
e(f'ds_read_b64 v[{P}:{P+1}], v{part_} offset:{WS2}')
e('s_waitcnt lgkmcnt(0)')
e(f'v_add_f32 v{var}, v{P}, v{P+1}')
e(f'v_mul_f32 v{var}, {INV512:#x}, v{var}')
ln_finish(mean, var, tq, rcp)
for j in range(4):
    ln_elem(H+4+j, H+j, mean, var, rcp, tq, P+2, P+3)
e(f'ds_write_b128 v{a_}, v[{H+4}:{H+7}] offset:{HN}')
e('s_waitcnt lgkmcnt(0)')
lab('L_C3_SKIP')
e('s_barrier')
if os.environ.get('CST'): stamp(0)
e('s_cmp_ge_u32 s14, 4')
e('s_cbranch_scc1 L_DONE')
e(f'v_lshrrev_b32 v{a_}, 1, v0')
e(f'v_lshlrev_b32 v{a_}, 2, v{a_}')
for b in range(2):
    for i in range(4):
        e(f'ds_read_b32 v{XS+b*4+i}, v{a_} offset:{HN+b*2048+i*512}')
e('s_waitcnt lgkmcnt(0)')
for i in range(4):
    unpack8(WGUr+4*i, T)
    for b in range(2):
        for j in range(4):
            pk_bc('mul' if i == 0 else 'fma', A+b*8+2*j, T+2*j, XS+b*4+i)
reduce_scatter16(A, (8, 4, 2))
e(f'v_lshlrev_b32 v{a_}, 7, v{WAVE}')
e(f'v_and_b32 v{c_}, 1, v0')
e(f'v_lshl_add_u32 v{a_}, v{c_}, 6, v{a_}')
e(f'v_and_b32 v{c_}, 48, v0')
e(f'v_add_u32 v{a_}, v{a_}, v{c_}')
e(f'ds_write_b128 v{a_}, v[{A}:{A+3}] offset:{REDC}')
e('s_waitcnt lgkmcnt(0)')
e('s_barrier')
e('s_cmp_lg_u32 s14, 0')
e('s_cbranch_scc1 L_C4_SKIP')
e('s_mov_b64 exec, 0xffff')
e(f'v_lshlrev_b32 v{a_}, 2, v0')
for w in range(4):
    e(f'ds_read_b32 v{A+w}, v{a_} offset:{REDC+w*128}')
    e(f'ds_read_b32 v{A+4+w}, v{a_} offset:{REDC+w*128+64}')
e('s_waitcnt lgkmcnt(0)')
for w in range(1, 4):
    e(f'v_add_f32 v{A}, v{A}, v{A+w}')
    e(f'v_add_f32 v{A+4}, v{A+4}, v{A+4+w}')
bf16_round(A, T)
bf16_round(A+4, T)
e(f'v_mul_f32 v{T+1}, s98, v{A}')
e(f'v_exp_f32 v{T+1}, -v{T+1}')
e('s_nop 0')
e(f'v_add_f32 v{T+1}, 1.0, v{T+1}')
e(f'v_rcp_f32 v{T+2}, v{T+1}')
e('s_nop 0')
e(f'v_mul_f32 v{T+3}, v{A}, v{T+2}')
e(f'v_fma_f32 v{T+4}, -v{T+3}, v{T+1}, v{A}')
e(f'v_fma_f32 v{T+3}, v{T+4}, v{T+2}, v{T+3}')
bf16_round(T+3, T)
e(f'v_mul_f32 v{T+3}, v{T+3}, v{A+4}')
bf16_round(T+3, T)
e(f'v_lshrrev_b32 v{a_}, 3, v0')
e(f'v_and_b32 v{c_}, 7, v0')
e(f'v_lshlrev_b32 v{a_}, 13, v{a_}')
e(f'v_lshl_add_u32 v{a_}, v{c_}, 2, v{a_}')
e('s_lshl_b32 s93, s12, 5')
e(f's_add_u32 s93, s93, {GU_BUF}')
e(f'buffer_store_dword v{T+3}, v{a_}, s[{SWS}:{SWS+3}], s93 offen sc1')
e('s_mov_b64 exec, -1')
stamp()
lab('L_C4_SKIP')
e('s_cmp_ge_u32 s11, 8')
e('s_cbranch_scc1 L_DONE')
e(f'v_lshlrev_b32 v{a_}, 2, v0')
G = 48
e('s_mov_b32 s99, 0')
lab('L_D_RETRY')
for b in range(2):
    for i in range(7):
        e(f's_mov_b32 s93, {GU_BUF + b*8192 + i*1024}')
        e(f'buffer_load_dword v{G+b*7+i}, v{a_}, s[{SWS}:{SWS+3}], s93 offen sc1')
e('s_waitcnt vmcnt(0)')
e(f'v_add_f32 v{T}, v{G}, v{G+1}')
e(f'v_add_f32 v{T+1}, v{G+2}, v{G+3}')
for i in range(4, 14, 2):
    e(f'v_add_f32 v{T}, v{T}, v{G+i}')
    e(f'v_add_f32 v{T+1}, v{T+1}, v{G+i+1}')
e(f'v_cmp_u_f32 vcc, v{T}, v{T+1}')
e('s_cbranch_vccz L_D_OK')
if RSD: e(f's_sleep {RSD}')
e('s_add_u32 s99, s99, 1')
e(f's_cmp_lt_u32 s99, {MAXPOLL}')
e('s_cbranch_scc1 L_D_RETRY')
lab('L_D_OK')
stamp()
for i in range(7):
    unpack8(WDr+4*i, T)
    for b in range(2):
        for j in range(4):
            pk_bc('mul' if i == 0 else 'fma', A+b*8+2*j, T+2*j, G+b*7+i)
reduce_scatter16(A, (8, 4, 2, 1))
e(f'v_lshlrev_b32 v{a_}, 6, v{WAVE}')
e(f'v_and_b32 v{c_}, 48, v0')
e(f'v_add_u32 v{a_}, v{a_}, v{c_}')
e(f'ds_write_b128 v{a_}, v[{A}:{A+3}] offset:{REDD}')
e('s_waitcnt lgkmcnt(0)')
e('s_barrier')
e('s_cmp_lg_u32 s14, 0')
e('s_cbranch_scc1 L_DONE')
e('s_mov_b64 exec, 0xffff')
e(f'v_lshlrev_b32 v{a_}, 2, v0')
for w in range(4):
    e(f'ds_read_b32 v{A+w}, v{a_} offset:{REDD+w*64}')
e(f'v_lshrrev_b32 v{part_}, 3, v0')
e(f'v_and_b32 v{c_}, 7, v0')
e(f'v_lshlrev_b32 v{part_}, 9, v{part_}')
e(f'v_add_u32 v{part_}, v{part_}, v{c_}')
e('s_lshl_b32 s93, s13, 3')
e(f'v_add_u32 v{part_}, s93, v{part_}')
e(f'v_lshlrev_b32 v{VX}, 2, v{part_}')
e(f'ds_read_b32 v{T}, v{VX} offset:{HB}')
e('s_waitcnt lgkmcnt(0)')
for w in range(1, 4):
    e(f'v_add_f32 v{A}, v{A}, v{A+w}')
bf16_round(A, T+1)
e(f'v_add_f32 v{A}, v{A}, v{T}')
e(f'v_cvt_pk_bf16_f32 v{A}, v{A}, v{A}')
e(f'v_lshlrev_b32 v{VX}, 1, v{part_}')
e(f'buffer_store_short v{A}, v{VX}, s[{SOUT}:{SOUT+3}], 0 offen')
e('s_mov_b64 exec, -1')
stamp()
lab('L_DONE')
e('s_endpgm')

hdr = list(HDR)
hdr.append(f'; @launch grid=(256,1,1) block=(1024,1,1) lds={LDS_TOTAL}')
hdr.append('.amdgcn_target "amdgcn-amd-amdhsa--gfx950"')
txt = '\n'.join(hdr) + '\n' + '\n'.join(out) + '\n'
txt += f'''.section .rodata,"a"
.p2align 6
.amdhsa_kernel {NAME}
  .amdhsa_next_free_vgpr 128
  .amdhsa_next_free_sgpr 102
  .amdhsa_accum_offset 128
  .amdhsa_group_segment_fixed_size 0
  .amdhsa_kernarg_size 96
  .amdhsa_user_sgpr_count 2
  .amdhsa_user_sgpr_kernarg_segment_ptr 1
  .amdhsa_system_sgpr_workgroup_id_x 1
  .amdhsa_float_denorm_mode_32 3
.end_amdhsa_kernel
'''
open(sys.argv[1] if len(sys.argv) > 1 else 'sequential_preLN__mha_block_cached__swiglu_ffn__decode.s', 'w').write(txt)
```
